```python
import torch

def _softmax(x, axis=-1):
    return torch.softmax(x, dim=axis)
def _gelu(x):
    return torch.nn.functional.gelu(x, approximate="tanh")
def _silu(x):
    return torch.nn.functional.silu(x)
def _sigmoid(x):
    return torch.sigmoid(x)
def _layernorm(x, axis=-1, eps=1e-5):
    m = x.mean(dim=axis, keepdim=True)
    v = x.var(dim=axis, keepdim=True, unbiased=False)
    return (x - m) / torch.sqrt(v + eps)
def _scatter_add(tgt, idx, src, axis=0):
    return tgt.clone().index_add_(axis, idx, src)
def _segment_sum(src, seg, n):
    out = torch.zeros((n,) + src.shape[1:], dtype=src.dtype)
    return out.index_add_(0, seg, src)
def _pad(x, pw):
    flat = tuple(v for pair in reversed(pw) for v in pair)
    return torch.nn.functional.pad(x, flat)

kernel_name = 'sequential_preLN__gqa_block_cached__dense_activation_squared_relu__decode'

def setup_inputs():

    _w = (lambda a: (lambda t: t.to(torch.bfloat16) if t.is_floating_point() else t)(torch.as_tensor(a)))
    def _A_setup():
        B, Sq, D = 1, 1, 576
        Hq, Hkv, Sk, Dh = 32, 16, 65536, 128
        assert Hq % Hkv == 0, (Hq, Hkv)
        return {
            "x": _w((lambda *s: torch.randn(*s, dtype=torch.bfloat16) * 0.05)(B, Sq, D)),
            "k_cache": _w((lambda *s: torch.randn(*s, dtype=torch.bfloat16) * 3.2)(B, Hkv, Sk, Dh)),
            "v_cache": _w((lambda *s: torch.randn(*s, dtype=torch.bfloat16) * 0.4)(B, Hkv, Sk, Dh)),
            "wq": _w((lambda *s: torch.randn(*s, dtype=torch.bfloat16) * 3.2)(D, Hq * Dh) * (D ** -0.5)),
            "wo": _w((lambda *s: torch.randn(*s, dtype=torch.bfloat16) * 0.4)(Hq * Dh, D) * ((Hq * Dh) ** -0.5)),
        }
    _A_in = _A_setup()

    def _B_setup():
        B, S, D, F = 1, 1, 576, 4608
        return {
            "x": _w((lambda *s: torch.randn(*s, dtype=torch.bfloat16) * 0.05)(B, S, D)),
            "w1": _w((lambda *s: torch.randn(*s, dtype=torch.bfloat16) * 0.05)(D, F)),
            "b1": _w((lambda *s: torch.randn(*s, dtype=torch.bfloat16) * 0.05)(F)),
            "w2": _w((lambda *s: torch.randn(*s, dtype=torch.bfloat16) * 0.05)(F, D)),
            "b2": _w((lambda *s: torch.randn(*s, dtype=torch.bfloat16) * 0.05)(D)),
        }
    _B_in = _B_setup()

    return {
        "A_x": _A_in["x"],
        "A_k_cache": _A_in["k_cache"],
        "A_v_cache": _A_in["v_cache"],
        "A_wq": _A_in["wq"],
        "A_wo": _A_in["wo"],
        "B_x": _B_in["x"],
        "B_w1": _B_in["w1"],
        "B_b1": _B_in["b1"],
        "B_w2": _B_in["w2"],
        "B_b2": _B_in["b2"],
    }

def reference(A_x, A_k_cache, A_v_cache, A_wq, A_wo, B_x, B_w1, B_b1, B_w2, B_b2):
    def _A_ref(x, k_cache, v_cache, wq, wo):
        B, Sq, D = x.shape
        Hq, Dh = 32, 128
        Hkv = k_cache.shape[1]
        rep = Hq // Hkv
        q = (lambda x, *d: x.permute(*d))((x @ wq).reshape(B, Sq, Hq, Dh), 0, 2, 1, 3)
        k = (lambda x, n, axis: torch.repeat_interleave(x, n, dim=axis))(k_cache, rep, axis=1)
        v = (lambda x, n, axis: torch.repeat_interleave(x, n, dim=axis))(v_cache, rep, axis=1)
        scores = torch.einsum("bhqd,bhkd->bhqk", q, k) * (Dh ** -0.5)
        p = _softmax(scores, axis=-1)
        o = torch.einsum("bhqk,bhkd->bhqd", p, v)
        return (lambda x, *d: x.permute(*d))(o, 0, 2, 1, 3).reshape(B, Sq, Hq * Dh) @ wo

    def _B_ref(x, w1, b1, w2, b2):
        h = torch.einsum("bsd,df->bsf", x, w1) + b1
        zero = torch.zeros_like(h)
        r = torch.where(h > zero, h, zero)
        h = r * r
        out = torch.einsum("bsf,fd->bsd", h, w2) + b2
        return out

    x = A_x
    h = x + _A_ref(_layernorm(x, axis=-1), A_k_cache, A_v_cache, A_wq, A_wo)
    h2 = h + _B_ref(_layernorm(h, axis=-1), B_w1, B_b1, B_w2, B_b2)
    return h2
```

```python
import sys, re

NAME = "sequential_preLN__gqa_block_cached__dense_activation_squared_relu__decode"
OUT = f"cdna_kernels/{NAME}.s"

WS_Q = 0
WS_ACC1 = 8192
WS_ACC2 = 12288
WS_ML = 16384
WS_O = 65536
WS_SIZE = 0x40000000

NCH = 16
NW = 16
U = 4
KEYS_PER_WG = 65536 // NCH
KEYS_PER_WAVE = KEYS_PER_WG // NW
NBLK = KEYS_PER_WAVE // (4 * U)

LOG2E = 0x3FB8AA3B
SCALE = 0x3DB504F3


class E:
    def __init__(self):
        self.l = []

    def __call__(self, s):
        for line in s.strip("\n").split("\n"):
            line = line.strip()
            if not line:
                continue
            m = re.search(r"offset:(\d+)", line)
            if m and line.startswith(("buffer_", "global_")):
                assert int(m.group(1)) < 4096, line
            if m and line.startswith("ds_"):
                assert int(m.group(1)) < 65536, line
            self.l.append("    " + line)

    def label(self, s):
        self.l.append(s + ":")

    def raw(self, s):
        self.l.append(s)

    def text(self):
        return "\n".join(self.l) + "\n"


def srd(e, d, b, nbytes):
    e(f"""
    s_mov_b32 s{d}, s{b}
    s_mov_b32 s{d+1}, s{b+1}
    s_mov_b32 s{d+2}, {nbytes}
    s_mov_b32 s{d+3}, 0x00020000
    """)


def rbf(e, dst, src):
    e(f"v_cvt_pk_bf16_f32 v{dst}, v{src}, v{src}")
    e(f"v_lshlrev_b32 v{dst}, 16, v{dst}")


DPP_ROW = ["quad_perm:[1,0,3,2]", "quad_perm:[2,3,0,1]", "row_half_mirror", "row_mirror"]


def row_allreduce(e, op, v):
    for c in DPP_ROW:
        e("s_nop 1")
        e(f"{op}_dpp v{v}, v{v}, v{v} {c} row_mask:0xf bank_mask:0xf")


def wave_reduce_to_sgpr(e, op, v, s):
    row_allreduce(e, op, v)
    e("s_nop 1")
    e(f"{op}_dpp v{v}, v{v}, v{v} row_bcast:15 row_mask:0xa bank_mask:0xf")
    e("s_nop 1")
    e(f"{op}_dpp v{v}, v{v}, v{v} row_bcast:31 row_mask:0xc bank_mask:0xf")
    e("s_nop 1")
    e(f"v_readlane_b32 s{s}, v{v}, 63")
    e("s_nop 3")


def div_precise(e, dst, num, den, t0, t1):
    e(f"""
    v_rcp_f32 v{t0}, v{den}
    s_nop 0
    v_mul_f32 v{dst}, v{num}, v{t0}
    v_fma_f32 v{t1}, -v{dst}, v{den}, v{num}
    v_fma_f32 v{dst}, v{t1}, v{t0}, v{dst}
    """)


def kernel_header(e, name):
    e.raw(f".globl {name}")
    e.raw(".p2align 8")
    e.raw(f".type {name},@function")
    e.label(name)


def kernel_desc(name, vgpr, sgpr=96):
    acc = (vgpr + 3) // 4 * 4
    return f""".amdhsa_kernel {name}
  .amdhsa_next_free_vgpr {vgpr}
  .amdhsa_next_free_sgpr {sgpr}
  .amdhsa_accum_offset {acc}
  .amdhsa_group_segment_fixed_size 0
  .amdhsa_kernarg_size 104
  .amdhsa_user_sgpr_count 2
  .amdhsa_user_sgpr_kernarg_segment_ptr 1
  .amdhsa_system_sgpr_workgroup_id_x 1
.end_amdhsa_kernel
"""


K0_WGS = 128
K0_LDS = 4 * 2304 + 8192


def gen_k0(e):
    name = "qproj_kernel"
    kernel_header(e, name)
    e(f"""
    s_cmp_ge_u32 s2, {K0_WGS}
    s_cbranch_scc1 K0_end
    s_load_dwordx2 s[4:5], s[0:1], 0
    s_load_dwordx2 s[6:7], s[0:1], 24
    s_load_dwordx2 s[8:9], s[0:1], 96
    v_and_b32 v1, 63, v0
    v_lshlrev_b32 v2, 1, v1
    v_and_b32 v3, 3, v0
    v_lshlrev_b32 v3, 4, v3
    v_lshrrev_b32 v4, 2, v0
    v_lshl_add_u32 v3, v4, 13, v3
    v_lshrrev_b32 v5, 6, v0
    s_waitcnt lgkmcnt(0)
    """)
    srd(e, 12, 4, 1152)
    srd(e, 16, 6, 576 * 8192)
    srd(e, 20, 8, WS_SIZE)
    for i in range(9):
        e(f"buffer_load_ushort v{10+i}, v2, s[12:15], 0 offen offset:{i*128}")
    e("s_lshl_b32 s24, s2, 6")
    for i in range(9):
        e(f"buffer_load_dwordx4 v[{32+4*i}:{35+4*i}], v3, s[16:19], s24 offen")
        if i < 8:
            e("s_add_u32 s24, s24, 0x80000")
    e(f"""
    s_cmp_lg_u32 s2, 0
    s_cbranch_scc1 K0_nozero
    v_mov_b32 v20, 0
    v_mov_b32 v21, 0
    v_mov_b32 v22, 0
    v_mov_b32 v23, 0
    v_lshlrev_b32 v24, 5, v0
    v_add_u32 v24, {WS_ACC1}, v24
    buffer_store_dwordx4 v[20:23], v24, s[20:23], 0 offen
    buffer_store_dwordx4 v[20:23], v24, s[20:23], 0 offen offset:16
    """)
    e.label("K0_nozero")
    e("s_waitcnt vmcnt(9)")
    e("s_cmp_lg_u32 s2, 0")
    e("s_cbranch_scc1 K0_xok")
    e("s_waitcnt vmcnt(0)")
    e.label("K0_xok")
    ln_wave(e, X=10, LN=10, T=20, S=26)
    e(f"""
    v_mul_u32_u24 v6, 2304, v5
    v_lshl_add_u32 v7, v1, 2, v6
    """)
    for i in range(9):
        e(f"ds_write_b32 v7, v{10+i} offset:{i*256}")
    e(f"""
    v_lshl_add_u32 v7, v4, 2, v6
    s_waitcnt lgkmcnt(0)
    """)
    for i in range(9):
        e(f"ds_read_b32 v{10+i}, v7 offset:{i*256}")
    for c in range(8):
        e(f"v_mov_b32 v{20+c}, 0")
    e("s_waitcnt vmcnt(0) lgkmcnt(0)")
    for i in range(9):
        for j in range(4):
            w = 32 + 4 * i + j
            e(f"v_lshlrev_b32 v28, 16, v{w}")
            e(f"v_and_b32 v29, 0xffff0000, v{w}")
            e(f"v_fmac_f32 v{20+2*j}, v{10+i}, v28")
            e(f"v_fmac_f32 v{21+2*j}, v{10+i}, v29")
    RED = 4 * 2304
    e(f"""
    v_lshlrev_b32 v7, 5, v0
    v_add_u32 v7, {RED}, v7
    ds_write_b128 v7, v[20:23]
    ds_write_b128 v7, v[24:27] offset:16
    s_waitcnt lgkmcnt(0)
    s_barrier
    v_readfirstlane_b32 s25, v5
    s_nop 3
    s_cmp_lg_u32 s25, 0
    s_cbranch_scc1 K0_end
    v_and_b32 v7, 31, v1
    v_lshlrev_b32 v8, 2, v7
    v_add_u32 v8, {RED}, v8
    """)
    for r in range(64):
        e(f"ds_read_b32 v{32+r}, v8 offset:{r*128}")
    e("s_waitcnt lgkmcnt(0)")
    n = 64
    while n > 1:
        h = n // 2
        for r in range(h):
            e(f"v_add_f32 v{32+r}, v{32+r}, v{32+r+h}")
        n = h
    e(f"""
    v_cvt_pk_bf16_f32 v32, v32, v32
    s_lshl_b32 s24, s2, 6
    v_lshlrev_b32 v8, 1, v7
    buffer_store_short v32, v8, s[20:23], s24 offen offset:{WS_Q}
    """)
    e.label("K0_end")
    e("s_endpgm")
    return name


def ln_wave(e, X, LN, T, S):
    for i in range(9):
        e(f"v_lshlrev_b32 v{X+i}, 16, v{X+i}")
    e(f"v_add_f32 v{T}, v{X}, v{X+1}")
    for i in range(2, 9):
        e(f"v_add_f32 v{T}, v{T}, v{X+i}")
    wave_reduce_to_sgpr(e, "v_add_f32", T, S)
    ln_mean(e, T, S)
    e(f"v_sub_f32 v{T+1}, v{X}, v{T}")
    e(f"v_mul_f32 v{T+2}, v{T+1}, v{T+1}")
    for i in range(1, 9):
        e(f"v_sub_f32 v{T+1}, v{X+i}, v{T}")
        e(f"v_fmac_f32 v{T+2}, v{T+1}, v{T+1}")
    wave_reduce_to_sgpr(e, "v_add_f32", T + 2, S)
    ln_finish_stats(e, T, S)
    for i in range(9):
        ln_apply(e, X + i, LN + i, T)


def ln_mean(e, T, S):
    e(f"""
    v_mov_b32 v{T+1}, s{S}
    v_mov_b32 v{T+2}, 0x44100000
    """)
    div_precise(e, T, T + 1, T + 2, T + 3, T + 4)


def ln_finish_stats(e, T, S):
    e(f"""
    v_mov_b32 v{T+2}, s{S}
    v_mov_b32 v{T+3}, 0x44100000
    """)
    div_precise(e, T + 1, T + 2, T + 3, T + 4, T + 5)
    rbf(e, T + 1, T + 1)
    e(f"v_add_f32 v{T+1}, 0x3727c5ac, v{T+1}")
    rbf(e, T + 1, T + 1)
    e(f"v_sqrt_f32 v{T+1}, v{T+1}")
    e("s_nop 0")
    rbf(e, T + 1, T + 1)
    rbf(e, T, T)


def ln_apply(e, x, dst, T):
    e(f"v_sub_f32 v{T+2}, v{x}, v{T}")
    rbf(e, T + 2, T + 2)
    div_precise(e, dst, T + 2, T + 1, T + 3, T + 4)
    rbf(e, dst, dst)


K1_WGS = 16 * NCH
K1_LDS = 98304


def gen_k1(e):
    name = "attn_kernel"
    kernel_header(e, name)
    Q = 2
    M = 10
    L = 12
    O = 14
    S = 30
    T = 40
    MX = 56
    AL = 58
    KB = [64, 96]
    VB = [80, 112]
    assert U == 4
    lognch = NCH.bit_length() - 1
    e(f"""
    s_cmp_ge_u32 s2, {K1_WGS}
    s_cbranch_scc1 K1_end
    s_load_dwordx2 s[4:5], s[0:1], 8
    s_load_dwordx2 s[6:7], s[0:1], 16
    s_load_dwordx2 s[8:9], s[0:1], 96
    v_and_b32 v1, 63, v0
    v_lshrrev_b32 v60, 6, v0
    v_lshlrev_b32 v61, 4, v1
    v_readfirstlane_b32 s26, v60
    s_lshr_b32 s24, s2, {lognch}
    s_and_b32 s25, s2, {NCH-1}
    s_mov_b32 s29, {SCALE}
    s_mov_b32 s30, {LOG2E}
    s_waitcnt lgkmcnt(0)
    """)
    srd(e, 12, 4, 0x10000000)
    srd(e, 16, 6, 0x10000000)
    srd(e, 20, 8, WS_SIZE)
    e(f"""
    s_lshl_b32 s27, s24, 24
    s_mul_i32 s28, s25, {KEYS_PER_WG*256}
    s_add_u32 s27, s27, s28
    s_mul_i32 s28, s26, {KEYS_PER_WAVE*256}
    s_add_u32 s27, s27, s28
    """)
    e(f"""
    v_and_b32 v62, 15, v1
    v_lshlrev_b32 v62, 4, v62
    s_lshl_b32 s28, s24, 9
    buffer_load_dwordx4 v[{Q}:{Q+3}], v62, s[20:23], s28 offen offset:{WS_Q}
    buffer_load_dwordx4 v[{Q+4}:{Q+7}], v62, s[20:23], s28 offen offset:{WS_Q+256}
    """)

    def loadK(buf):
        for u in range(U):
            e(f"buffer_load_dwordx4 v[{KB[buf]+4*u}:{KB[buf]+4*u+3}], v61, s[12:15], s27 offen offset:{u*1024} nt")

    def loadV(buf):
        for u in range(U):
            e(f"buffer_load_dwordx4 v[{VB[buf]+4*u}:{VB[buf]+4*u+3}], v61, s[16:19], s27 offen offset:{u*1024} nt")

    loadK(0)
    loadV(0)
    e(f"s_add_u32 s27, s27, {U*1024}")
    loadK(1)
    loadV(1)
    e(f"s_add_u32 s27, s27, {U*1024}")
    e(f"v_mov_b32 v{M}, 0xff800000")
    e(f"v_mov_b32 v{M+1}, 0xff800000")
    e(f"v_mov_b32 v{L}, 0")
    e(f"v_mov_b32 v{L+1}, 0")
    for i in range(16):
        e(f"v_mov_b32 v{O+i}, 0")

    def scores(buf):
        kb = KB[buf]
        for j in range(4):
            for u in range(U):
                for h in range(2):
                    if j == 0:
                        e(f"v_dot2_f32_bf16 v{S+2*u+h}, v{kb+4*u}, v{Q+4*h}, 0")
                    else:
                        e(f"v_dot2c_f32_bf16 v{S+2*u+h}, v{kb+4*u+j}, v{Q+4*h+j}")

    def softmax_part():
        for c in DPP_ROW:
            for k in range(2 * U):
                e(f"v_add_f32_dpp v{S+k}, v{S+k}, v{S+k} {c} row_mask:0xf bank_mask:0xf")
        for u in range(U):
            e(f"v_cvt_pk_bf16_f32 v{T+u}, v{S+2*u}, v{S+2*u+1}")
        for u in range(U):
            e(f"v_lshlrev_b32 v{S+2*u}, 16, v{T+u}")
            e(f"v_and_b32 v{S+2*u+1}, 0xffff0000, v{T+u}")
        for k in range(2 * U):
            e(f"v_mul_f32 v{S+k}, s29, v{S+k}")
        for u in range(U):
            e(f"v_cvt_pk_bf16_f32 v{T+u}, v{S+2*u}, v{S+2*u+1}")
        for u in range(U):
            e(f"v_lshlrev_b32 v{S+2*u}, 16, v{T+u}")
            e(f"v_and_b32 v{S+2*u+1}, 0xffff0000, v{T+u}")
        for h in range(2):
            e(f"v_max3_f32 v{MX+h}, v{M+h}, v{S+h}, v{S+2+h}")
        for h in range(2):
            e(f"v_max3_f32 v{MX+h}, v{MX+h}, v{S+4+h}, v{S+6+h}")
        for h in range(2):
            e(f"v_sub_f32 v{AL+h}, v{M+h}, v{MX+h}")
        for k in range(2 * U):
            e(f"v_sub_f32 v{S+k}, v{S+k}, v{MX+(k&1)}")
        for h in range(2):
            e(f"v_mul_f32 v{AL+h}, s30, v{AL+h}")
        for k in range(2 * U):
            e(f"v_mul_f32 v{S+k}, s30, v{S+k}")
        for h in range(2):
            e(f"v_exp_f32 v{AL+h}, v{AL+h}")
        for k in range(2 * U):
            e(f"v_exp_f32 v{S+k}, v{S+k}")
        for h in range(2):
            e(f"v_mov_b32 v{M+h}, v{MX+h}")
        for h in range(2):
            e(f"v_mul_f32 v{L+h}, v{L+h}, v{AL+h}")
        for h in range(2):
            for i in range(8):
                e(f"v_mul_f32 v{O+8*h+i}, v{O+8*h+i}, v{AL+h}")
        for u in range(U):
            for h in range(2):
                e(f"v_add_f32 v{L+h}, v{L+h}, v{S+2*u+h}")

    def pv(buf):
        vb = VB[buf]
        for u in range(U):
            t = T + 8 * (u & 1)
            for j in range(4):
                e(f"v_lshlrev_b32 v{t+2*j}, 16, v{vb+4*u+j}")
                e(f"v_and_b32 v{t+2*j+1}, 0xffff0000, v{vb+4*u+j}")
            for h in range(2):
                for i in range(8):
                    e(f"v_fmac_f32 v{O+8*h+i}, v{S+2*u+h}, v{t+i}")

    assert NBLK % 2 == 0 and NBLK >= 4
    e(f"s_mov_b32 s28, {(NBLK-2)//2}")
    e.label("K1_loop")
    for buf in range(2):
        e("s_waitcnt vmcnt(12)")
        scores(buf)
        loadK(buf)
        softmax_part()
        e("s_waitcnt vmcnt(12)")
        pv(buf)
        loadV(buf)
        e(f"s_add_u32 s27, s27, {U*1024}")
    e("""
    s_sub_u32 s28, s28, 1
    s_cmp_lg_u32 s28, 0
    s_cbranch_scc1 K1_loop
    """)
    e("s_waitcnt vmcnt(12)")
    scores(0)
    softmax_part()
    e("s_waitcnt vmcnt(8)")
    pv(0)
    e("s_waitcnt vmcnt(4)")
    scores(1)
    softmax_part()
    e("s_waitcnt vmcnt(0)")
    pv(1)

    MB = 65536
    e(f"""
    v_lshrrev_b32 v40, 4, v0
    v_and_b32 v41, 15, v1
    v_lshlrev_b32 v42, 10, v40
    v_lshl_add_u32 v42, v41, 5, v42
    ds_write_b128 v42, v[{O}:{O+3}]
    ds_write_b128 v42, v[{O+4}:{O+7}] offset:16
    ds_write_b128 v42, v[{O+8}:{O+11}] offset:512
    ds_write_b128 v42, v[{O+12}:{O+15}] offset:528
    v_lshlrev_b32 v43, 2, v40
    v_add_u32 v43, {MB}, v43
    ds_write_b32 v43, v{M}
    ds_write_b32 v43, v{M+1} offset:256
    ds_write_b32 v43, v{L} offset:512
    ds_write_b32 v43, v{L+1} offset:768
    s_waitcnt lgkmcnt(0)
    s_barrier
    s_cmp_ge_u32 s26, 4
    s_cbranch_scc1 K1_end
    s_lshr_b32 s31, s26, 1
    s_and_b32 s32, s26, 1
    s_lshl_b32 s33, s31, 8
    v_lshlrev_b32 v43, 2, v1
    v_add_u32 v43, s33, v43
    v_add_u32 v43, {MB}, v43
    ds_read_b32 v44, v43
    ds_read_b32 v45, v43 offset:512
    s_lshl_b32 s33, s31, 9
    s_lshl_b32 s34, s32, 8
    s_add_u32 s33, s33, s34
    v_lshlrev_b32 v46, 2, v1
    v_add_u32 v46, s33, v46
    """)
    for g in range(64):
        e(f"ds_read_b32 v{64+g}, v46 offset:{g*1024}")
    e("s_waitcnt lgkmcnt(15)")
    e("s_waitcnt lgkmcnt(0)")
    e("v_mov_b32 v47, v44")
    wave_reduce_to_sgpr(e, "v_max_f32", 47, 36)
    e(f"""
    v_subrev_f32 v47, s36, v44
    v_mul_f32 v47, s30, v47
    v_exp_f32 v47, v47
    s_nop 0
    v_mul_f32 v48, v47, v45
    """)
    wave_reduce_to_sgpr(e, "v_add_f32", 48, 37)
    e("v_mov_b32 v49, 0")
    for g in range(64):
        e(f"v_readlane_b32 s{40+(g&7)}, v47, {g}")
        if (g & 7) == 7:
            e("s_nop 1")
            for k in range(8):
                e(f"v_fmac_f32 v49, s{40+k}, v{64+g-7+k}")
    e(f"""
    s_lshl_b32 s33, s24, 1
    s_add_u32 s33, s33, s31
    s_lshl_b32 s33, s33, {lognch}
    s_add_u32 s33, s33, s25
    s_lshl_b32 s34, s33, 9
    s_lshl_b32 s35, s32, 8
    s_add_u32 s34, s34, s35
    s_add_u32 s34, s34, {WS_O}
    v_lshlrev_b32 v46, 2, v1
    buffer_store_dword v49, v46, s[20:23], s34 offen
    s_cmp_lg_u32 s32, 0
    s_cbranch_scc1 K1_end
    s_lshl_b32 s34, s33, 3
    s_add_u32 s34, s34, {WS_ML}
    v_mov_b32 v50, s36
    v_mov_b32 v51, s37
    v_mov_b32 v46, 0
    v_cmp_eq_u32 vcc, 0, v1
    s_and_saveexec_b64 s[38:39], vcc
    buffer_store_dwordx2 v[50:51], v46, s[20:23], s34 offen
    """)
    e.label("K1_end")
    e("s_endpgm")
    return name


K2_WGS = 288
K2_LDS = 512 + 8192


def gen_k2(e):
    name = "oproj_kernel"
    kernel_header(e, name)
    assert NCH == 16
    e(f"""
    s_cmp_ge_u32 s2, {K2_WGS}
    s_cbranch_scc1 K2_end
    s_load_dwordx2 s[4:5], s[0:1], 32
    s_load_dwordx2 s[8:9], s[0:1], 96
    s_mov_b32 s30, {LOG2E}
    s_mov_b32 s3, 0x1c71c71d
    s_mul_hi_u32 s24, s2, s3
    s_mul_i32 s25, s24, 9
    s_sub_u32 s25, s2, s25
    v_and_b32 v1, 63, v0
    v_lshrrev_b32 v2, 6, v0
    v_and_b32 v3, 7, v0
    v_lshrrev_b32 v4, 3, v0
    v_readfirstlane_b32 s26, v2
    s_waitcnt lgkmcnt(0)
    """)
    srd(e, 12, 4, 4096 * 1152)
    srd(e, 20, 8, WS_SIZE)
    e(f"""
    v_mul_u32_u24 v5, 1152, v4
    v_lshl_add_u32 v5, v3, 4, v5
    s_mul_i32 s27, s24, {128*1152}
    s_lshl_b32 s28, s25, 7
    s_add_u32 s27, s27, s28
    """)
    for i in range(4):
        e(f"buffer_load_dwordx4 v[{32+4*i}:{35+4*i}], v5, s[12:15], s27 offen")
        if i < 3:
            e(f"s_add_u32 s27, s27, {32*1152}")
    e(f"""
    s_cmp_ge_u32 s26, 2
    s_cbranch_scc1 K2_skipcomb
    s_lshl_b32 s27, s24, 7
    s_add_u32 s27, s27, {WS_ML}
    v_and_b32 v6, 15, v1
    v_lshlrev_b32 v6, 3, v6
    buffer_load_dwordx2 v[8:9], v6, s[20:23], s27 offen
    s_lshl_b32 s27, s24, 13
    s_add_u32 s27, s27, {WS_O}
    v_lshlrev_b32 v7, 2, v0
    """)
    for c in range(16):
        if c == 8:
            e("s_add_u32 s27, s27, 4096")
        e(f"buffer_load_dword v{48+c}, v7, s[20:23], s27 offen offset:{(c&7)*512}")
    e(f"""
    s_waitcnt vmcnt(16)
    v_mov_b32 v10, v8
    """)
    row_allreduce(e, "v_max_f32", 10)
    e(f"""
    v_sub_f32 v10, v8, v10
    v_mul_f32 v10, s30, v10
    v_exp_f32 v10, v10
    s_nop 0
    v_mul_f32 v11, v10, v9
    """)
    row_allreduce(e, "v_add_f32", 11)
    e("s_waitcnt vmcnt(0)")
    e("v_mov_b32 v12, 0")
    for c in range(16):
        e(f"v_readlane_b32 s{40+c}, v10, {c}")
    e("s_nop 1")
    for c in range(16):
        e(f"v_fmac_f32 v12, s{40+c}, v{48+c}")
    div_precise(e, 13, 12, 11, 14, 15)
    rbf(e, 13, 13)
    e(f"""
    ds_write_b32 v7, v13
    """)
    e.label("K2_skipcomb")
    e(f"""
    s_waitcnt lgkmcnt(0)
    s_barrier
    v_lshlrev_b32 v6, 2, v4
    ds_read_b32 v16, v6
    ds_read_b32 v17, v6 offset:128
    ds_read_b32 v18, v6 offset:256
    ds_read_b32 v19, v6 offset:384
    """)
    for c in range(8):
        e(f"v_mov_b32 v{20+c}, 0")
    e("s_waitcnt vmcnt(0) lgkmcnt(0)")
    for i in range(4):
        for j in range(4):
            w = 32 + 4 * i + j
            e(f"v_lshlrev_b32 v28, 16, v{w}")
            e(f"v_and_b32 v29, 0xffff0000, v{w}")
            e(f"v_fmac_f32 v{20+2*j}, v{16+i}, v28")
            e(f"v_fmac_f32 v{21+2*j}, v{16+i}, v29")
    e(f"""
    v_lshlrev_b32 v6, 5, v0
    ds_write_b128 v6, v[20:23] offset:512
    ds_write_b128 v6, v[24:27] offset:528
    s_waitcnt lgkmcnt(0)
    s_barrier
    s_cmp_lg_u32 s26, 0
    s_cbranch_scc1 K2_end
    v_lshlrev_b32 v6, 2, v1
    """)
    for r in range(32):
        e(f"ds_read_b32 v{32+r}, v6 offset:{512+r*256}")
    e("s_waitcnt lgkmcnt(0)")
    n = 32
    while n > 1:
        h = n // 2
        for r in range(h):
            e(f"v_add_f32 v{32+r}, v{32+r}, v{32+r+h}")
        n = h
    e(f"""
    s_lshl_b32 s27, s25, 8
    s_add_u32 s27, s27, {WS_ACC1}
    buffer_atomic_add_f32 v32, v6, s[20:23], s27 offen
    """)
    e.label("K2_end")
    e("s_endpgm")
    return name


K3_WGS = 144
K3_LDS = 32768


def gen_k3(e):
    name = "ffn_kernel"
    kernel_header(e, name)
    L_RED = 0
    L_LN = 256
    L_H1 = 2560
    L_P2 = 2688
    L_FLAG = 4992
    L_BIG = 8192
    e(f"""
    s_cmp_ge_u32 s2, {K3_WGS}
    s_cbranch_scc1 K3_end
    s_load_dwordx2 s[4:5], s[0:1], 0
    s_load_dwordx4 s[48:51], s[0:1], 48
    s_load_dwordx4 s[52:55], s[0:1], 64
    s_load_dwordx4 s[56:59], s[0:1], 80
    s_load_dwordx2 s[8:9], s[0:1], 96
    v_and_b32 v1, 63, v0
    v_lshrrev_b32 v2, 6, v0
    v_and_b32 v3, 3, v0
    v_lshrrev_b32 v4, 2, v0
    v_readfirstlane_b32 s26, v2
    s_waitcnt lgkmcnt(0)
    """)
    srd(e, 12, 4, 1152)
    srd(e, 16, 48, 576 * 9216)
    srd(e, 20, 8, WS_SIZE)
    srd(e, 60, 50, 9216)
    srd(e, 64, 52, 4608 * 1152)
    srd(e, 68, 54, 1152)
    srd(e, 72, 56, 1152)
    srd(e, 76, 58, 256)
    e(f"""
    v_lshlrev_b32 v5, 1, v0
    v_lshlrev_b32 v6, 2, v0
    buffer_load_ushort v10, v5, s[12:15], 0 offen
    buffer_load_dword v11, v6, s[20:23], 0 offen offset:{0}
    """.replace("offset:0", ""))
    e.l.pop()
    e(f"""
    s_mov_b32 s27, {WS_ACC1}
    buffer_load_dword v11, v6, s[20:23], s27 offen
    buffer_load_ushort v12, v5, s[68:71], 0 offen
    v_and_b32 v7, 31, v0
    v_lshlrev_b32 v7, 1, v7
    s_lshl_b32 s27, s2, 6
    buffer_load_ushort v13, v7, s[60:63], s27 offen
    s_mov_b32 s28, 9216
    v_mul_lo_u32 v8, v4, s28
    v_lshl_add_u32 v8, v3, 4, v8
    """)
    for i in range(4):
        e(f"buffer_load_dwordx4 v[{32+4*i}:{35+4*i}], v8, s[16:19], s27 offen")
        if i < 3:
            e(f"s_add_u32 s27, s27, {144*9216}")
    e(f"""
    s_mul_i32 s27, s2, 36864
    v_lshlrev_b32 v9, 4, v0
    """)
    for i in range(4):
        e(f"buffer_load_dwordx4 v[{48+4*i}:{51+4*i}], v9, s[64:67], s27 offen")
        if i < 3:
            e(f"s_add_u32 s27, s27, {576*16}")
    e("s_waitcnt vmcnt(10)")
    e("v_lshlrev_b32 v10, 16, v10")
    rbf(e, 11, 11)
    e("v_add_f32 v10, v10, v11")
    rbf(e, 10, 10)
    e("v_mov_b32 v20, v10")
    wave_reduce_to_sgpr(e, "v_add_f32", 20, 30)
    e(f"""
    v_mov_b32 v20, s30
    v_lshlrev_b32 v21, 2, v2
    ds_write_b32 v21, v20 offset:{L_RED}
    s_waitcnt lgkmcnt(0)
    s_barrier
    v_mov_b32 v21, 0
    """)
    for w in range(9):
        e(f"ds_read_b32 v{64+w}, v21 offset:{L_RED+4*w}")
    e("s_waitcnt lgkmcnt(0)")
    for w in range(1, 9):
        e(f"v_add_f32 v64, v64, v{64+w}")
    e(f"""
    v_mov_b32 v21, v64
    v_mov_b32 v22, 0x44100000
    """)
    div_precise(e, 20, 21, 22, 23, 24)
    e(f"""
    v_sub_f32 v21, v10, v20
    v_mul_f32 v21, v21, v21
    """)
    wave_reduce_to_sgpr(e, "v_add_f32", 21, 30)
    e(f"""
    v_mov_b32 v22, s30
    v_lshlrev_b32 v21, 2, v2
    ds_write_b32 v21, v22 offset:{L_RED+64}
    s_waitcnt lgkmcnt(0)
    s_barrier
    v_mov_b32 v21, 0
    """)
    for w in range(9):
        e(f"ds_read_b32 v{64+w}, v21 offset:{L_RED+64+4*w}")
    e("s_waitcnt lgkmcnt(0)")
    for w in range(1, 9):
        e(f"v_add_f32 v64, v64, v{64+w}")
    e(f"""
    v_mov_b32 v22, v64
    v_mov_b32 v23, 0x44100000
    """)
    div_precise(e, 21, 22, 23, 24, 25)
    rbf(e, 21, 21)
    e("v_add_f32 v21, 0x3727c5ac, v21")
    rbf(e, 21, 21)
    e("v_sqrt_f32 v21, v21")
    e("s_nop 0")
    rbf(e, 21, 21)
    rbf(e, 20, 20)
    ln_apply(e, 10, 26, 20)
    e(f"""
    ds_write_b32 v6, v26 offset:{L_LN}
    s_waitcnt lgkmcnt(0)
    s_barrier
    v_lshlrev_b32 v21, 2, v4
    ds_read_b32 v16, v21 offset:{L_LN}
    ds_read_b32 v17, v21 offset:{L_LN+576}
    ds_read_b32 v18, v21 offset:{L_LN+1152}
    ds_read_b32 v19, v21 offset:{L_LN+1728}
    """)
    for c in range(8):
        e(f"v_mov_b32 v{20+c}, 0")
    e("s_waitcnt vmcnt(4) lgkmcnt(0)")
    for i in range(4):
        for j in range(4):
            w = 32 + 4 * i + j
            e(f"v_lshlrev_b32 v28, 16, v{w}")
            e(f"v_and_b32 v29, 0xffff0000, v{w}")
            e(f"v_fmac_f32 v{20+2*j}, v{16+i}, v28")
            e(f"v_fmac_f32 v{21+2*j}, v{16+i}, v29")
    e(f"""
    v_lshlrev_b32 v30, 5, v0
    v_add_u32 v30, {L_BIG}, v30
    ds_write_b128 v30, v[20:23]
    ds_write_b128 v30, v[24:27] offset:16
    s_waitcnt lgkmcnt(0)
    s_barrier
    v_and_b32 v30, 31, v0
    v_lshrrev_b32 v31, 5, v0
    v_lshlrev_b32 v31, 10, v31
    v_lshl_add_u32 v30, v30, 2, v31
    v_add_u32 v30, {L_BIG}, v30
    """)
    for r in range(8):
        e(f"ds_read_b32 v{20+r}, v30 offset:{r*128}")
    e("s_waitcnt lgkmcnt(0)")
    for r in range(1, 8):
        e(f"v_add_f32 v20, v20, v{20+r}")
    e(f"""
    ds_write_b32 v6, v20 offset:{L_P2}
    s_waitcnt lgkmcnt(0)
    s_barrier
    s_cmp_lg_u32 s26, 0
    s_cbranch_scc1 K3_skiph1
    v_and_b32 v30, 31, v0
    v_lshlrev_b32 v30, 2, v30
    """)
    for r in range(18):
        e(f"ds_read_b32 v{64+r}, v30 offset:{L_P2+r*128}")
    e("s_waitcnt lgkmcnt(0)")
    for r in range(1, 18):
        e(f"v_add_f32 v64, v64, v{64+r}")
    rbf(e, 64, 64)
    e("v_lshlrev_b32 v13, 16, v13")
    e("v_add_f32 v64, v64, v13")
    rbf(e, 64, 64)
    e("v_max_f32 v64, 0, v64")
    e("v_mul_f32 v64, v64, v64")
    rbf(e, 64, 64)
    e(f"ds_write_b32 v30, v64 offset:{L_H1}")
    e.label("K3_skiph1")
    e(f"""
    s_waitcnt lgkmcnt(0)
    s_barrier
    s_mov_b32 s28, 0x38e38e4
    v_mul_hi_u32 v30, v0, s28
    v_lshlrev_b32 v31, 2, v30
    ds_read_b32 v16, v31 offset:{L_H1}
    ds_read_b32 v17, v31 offset:{L_H1+32}
    ds_read_b32 v18, v31 offset:{L_H1+64}
    ds_read_b32 v19, v31 offset:{L_H1+96}
    """)
    for c in range(8):
        e(f"v_mov_b32 v{20+c}, 0")
    e("s_waitcnt vmcnt(0) lgkmcnt(0)")
    for i in range(4):
        for j in range(4):
            w = 48 + 4 * i + j
            e(f"v_lshlrev_b32 v28, 16, v{w}")
            e(f"v_and_b32 v29, 0xffff0000, v{w}")
            e(f"v_fmac_f32 v{20+2*j}, v{16+i}, v28")
            e(f"v_fmac_f32 v{21+2*j}, v{16+i}, v29")
    e(f"""
    v_lshlrev_b32 v30, 5, v0
    v_add_u32 v30, {L_BIG}, v30
    ds_write_b128 v30, v[20:23]
    ds_write_b128 v30, v[24:27] offset:16
    s_waitcnt lgkmcnt(0)
    s_barrier
    v_add_u32 v30, {L_BIG}, v6
    """)
    for r in range(8):
        e(f"ds_read_b32 v{20+r}, v30 offset:{r*2304}")
    e("s_waitcnt lgkmcnt(0)")
    for r in range(1, 8):
        e(f"v_add_f32 v20, v20, v{20+r}")
    e(f"""
    s_mov_b32 s27, {WS_ACC2}
    buffer_atomic_add_f32 v20, v6, s[20:23], s27 offen
    s_waitcnt vmcnt(0)
    s_barrier
    s_cmp_lg_u32 s26, 0
    s_cbranch_scc1 K3_skipcnt
    v_mov_b32 v21, 1
    v_mov_b32 v22, 0
    v_cmp_eq_u32 vcc, 0, v1
    s_and_saveexec_b64 s[38:39], vcc
    buffer_atomic_add v21, v22, s[76:79], 0 offen sc0
    s_waitcnt vmcnt(0)
    ds_write_b32 v22, v21 offset:{L_FLAG}
    s_mov_b64 exec, s[38:39]
    """)
    e.label("K3_skipcnt")
    e(f"""
    s_waitcnt lgkmcnt(0)
    s_barrier
    v_mov_b32 v22, 0
    ds_read_b32 v21, v22 offset:{L_FLAG}
    s_waitcnt lgkmcnt(0)
    s_nop 0
    v_readfirstlane_b32 s28, v21
    s_nop 3
    s_cmp_lg_u32 s28, {K3_WGS-1}
    s_cbranch_scc1 K3_end
    v_mov_b32 v20, 0
    buffer_atomic_add_f32 v20, v6, s[20:23], s27 offen sc0
    s_waitcnt vmcnt(0)
    """)
    rbf(e, 20, 20)
    e("v_lshlrev_b32 v12, 16, v12")
    e("v_add_f32 v20, v20, v12")
    rbf(e, 20, 20)
    e("v_add_f32 v20, v20, v10")
    e("v_cvt_pk_bf16_f32 v20, v20, v20")
    e("buffer_store_short v20, v5, s[72:75], 0 offen")
    e.label("K3_end")
    e("s_endpgm")
    return name


def main():
    ref = open(f"cdna_kernels/{NAME}.s.ref").read().split("\n")
    head = [l for l in ref if l.startswith(";") and "@launch" not in l and "Override launch" not in l and "grid=ceil" not in l]
    out = list(head)
    out.append(f"; @launch kernel=qproj_kernel grid=({K0_WGS},1,1) block=(256,1,1) lds={K0_LDS}")
    out.append(f"; @launch kernel=attn_kernel grid=({K1_WGS},1,1) block=({NW*64},1,1) lds={K1_LDS}")
    out.append(f"; @launch kernel=oproj_kernel grid=({K2_WGS},1,1) block=(256,1,1) lds={K2_LDS}")
    out.append(f"; @launch kernel=ffn_kernel grid=({K3_WGS},1,1) block=(576,1,1) lds={K3_LDS}")
    out.append('.amdgcn_target "amdgcn-amd-amdhsa--gfx950"')
    out.append(".text")
    e = E()
    gen_k0(e)
    gen_k1(e)
    gen_k2(e)
    gen_k3(e)
    s = "\n".join(out) + "\n" + e.text()
    s += '.section .rodata,"a"\n.p2align 6\n'
    s += kernel_desc("qproj_kernel", 96)
    s += ".p2align 6\n" + kernel_desc("attn_kernel", 128)
    s += ".p2align 6\n" + kernel_desc("oproj_kernel", 64)
    s += ".p2align 6\n" + kernel_desc("ffn_kernel", 84)
    open(OUT, "w").write(s)
    print("wrote", OUT, len(s))


if __name__ == "__main__":
    main()
```

```python
import sys, re

NAME = "sequential_preLN__gqa_block_cached__dense_activation_squared_relu__decode"
import os
OUT = os.environ.get("OUT", f"cdna_kernels/{NAME}.s")
NOCOMP = int(os.environ.get("NOCOMP", "0"))
NT = " nt" if int(os.environ.get("NT", "1")) else ""
ILV = int(os.environ.get("ILV", "0"))

WS_Q = 0
NREP1 = 4
NREP2 = 16
WS_ML = 8192
WS_ACC1 = 16384
WS_ACC2 = WS_ACC1 + NREP1 * 2304
ACC_BYTES = ((NREP1 + NREP2) * 2304 + 1023) // 1024 * 1024
assert WS_ACC1 + ACC_BYTES <= 65536
WS_O = 65536
WS_SIZE = 0x40000000

NCH = int(os.environ.get("NCH", "16"))
NW = int(os.environ.get("NW", "16"))
ROT = int(os.environ.get("ROT", "0"))
U = 4
KEYS_PER_WG = 65536 // NCH
KEYS_PER_WAVE = KEYS_PER_WG // NW
NBLK = KEYS_PER_WAVE // (4 * U)

LOG2E = 0x3FB8AA3B
SCALE = 0x3DB504F3


class E:
    def __init__(self):
        self.l = []

    def __call__(self, s):
        for line in s.strip("\n").split("\n"):
            line = line.strip()
            if not line:
                continue
            m = re.search(r"offset:(\d+)", line)
            if m and line.startswith(("buffer_", "global_")):
                assert int(m.group(1)) < 4096, line
            if m and line.startswith("ds_"):
                assert int(m.group(1)) < 65536, line
            self.l.append("    " + line)

    def label(self, s):
        self.l.append(s + ":")

    def raw(self, s):
        self.l.append(s)

    def text(self):
        return "\n".join(self.l) + "\n"


def srd(e, d, b, nbytes):
    e(f"""
    s_mov_b32 s{d}, s{b}
    s_mov_b32 s{d+1}, s{b+1}
    s_mov_b32 s{d+2}, {nbytes}
    s_mov_b32 s{d+3}, 0x00020000
    """)


def rbf(e, dst, src):
    e(f"v_cvt_pk_bf16_f32 v{dst}, v{src}, v{src}")
    e(f"v_lshlrev_b32 v{dst}, 16, v{dst}")


DPP_ROW = ["quad_perm:[1,0,3,2]", "quad_perm:[2,3,0,1]", "row_half_mirror", "row_mirror"]


def row_allreduce(e, op, v):
    for c in DPP_ROW:
        e("s_nop 1")
        e(f"{op}_dpp v{v}, v{v}, v{v} {c} row_mask:0xf bank_mask:0xf")


def wave_reduce_to_sgpr(e, op, v, s):
    row_allreduce(e, op, v)
    e("s_nop 1")
    e(f"{op}_dpp v{v}, v{v}, v{v} row_bcast:15 row_mask:0xa bank_mask:0xf")
    e("s_nop 1")
    e(f"{op}_dpp v{v}, v{v}, v{v} row_bcast:31 row_mask:0xc bank_mask:0xf")
    e("s_nop 1")
    e(f"v_readlane_b32 s{s}, v{v}, 63")
    e("s_nop 3")


def div_precise(e, dst, num, den, t0, t1):
    e(f"""
    v_rcp_f32 v{t0}, v{den}
    s_nop 0
    v_mul_f32 v{dst}, v{num}, v{t0}
    v_fma_f32 v{t1}, -v{dst}, v{den}, v{num}
    v_fma_f32 v{dst}, v{t1}, v{t0}, v{dst}
    """)


def kernel_header(e, name):
    e.raw(f".globl {name}")
    e.raw(".p2align 8")
    e.raw(f".type {name},@function")
    e.label(name)


def kernel_desc(name, vgpr, sgpr=96):
    acc = (vgpr + 3) // 4 * 4
    return f""".amdhsa_kernel {name}
  .amdhsa_next_free_vgpr {vgpr}
  .amdhsa_next_free_sgpr {sgpr}
  .amdhsa_accum_offset {acc}
  .amdhsa_group_segment_fixed_size 0
  .amdhsa_kernarg_size 104
  .amdhsa_user_sgpr_count 2
  .amdhsa_user_sgpr_kernarg_segment_ptr 1
  .amdhsa_system_sgpr_workgroup_id_x 1
.end_amdhsa_kernel
"""


K0_WGS = 128
K0_LDS = 4 * 2304 + 8192


def gen_k0(e):
    name = "qproj_kernel"
    kernel_header(e, name)
    e(f"""
    s_cmp_ge_u32 s2, {K0_WGS}
    s_cbranch_scc1 K0_end
    s_load_dwordx2 s[4:5], s[0:1], 0
    s_load_dwordx2 s[6:7], s[0:1], 24
    s_load_dwordx2 s[8:9], s[0:1], 96
    v_and_b32 v1, 63, v0
    v_lshlrev_b32 v2, 1, v1
    v_and_b32 v3, 3, v0
    v_lshlrev_b32 v3, 4, v3
    v_lshrrev_b32 v4, 2, v0
    v_lshl_add_u32 v3, v4, 13, v3
    v_lshrrev_b32 v5, 6, v0
    s_waitcnt lgkmcnt(0)
    """)
    srd(e, 12, 4, 1152)
    srd(e, 16, 6, 576 * 8192)
    srd(e, 20, 8, WS_SIZE)
    for i in range(9):
        e(f"buffer_load_ushort v{10+i}, v2, s[12:15], 0 offen offset:{i*128}")
    e("s_lshl_b32 s24, s2, 6")
    for i in range(9):
        e(f"buffer_load_dwordx4 v[{32+4*i}:{35+4*i}], v3, s[16:19], s24 offen")
        if i < 8:
            e("s_add_u32 s24, s24, 0x80000")
    e(f"""
    s_cmp_lg_u32 s2, 0
    s_cbranch_scc1 K0_nozero
    v_mov_b32 v20, 0
    v_mov_b32 v21, 0
    v_mov_b32 v22, 0
    v_mov_b32 v23, 0
    v_lshlrev_b32 v24, 5, v0
    v_add_u32 v24, {WS_ACC1}, v24
    buffer_store_dwordx4 v[20:23], v24, s[20:23], 0 offen
    buffer_store_dwordx4 v[20:23], v24, s[20:23], 0 offen offset:16
    """)
    e.label("K0_nozero")
    e("s_waitcnt vmcnt(9)")
    e("s_cmp_lg_u32 s2, 0")
    e("s_cbranch_scc1 K0_xok")
    e("s_waitcnt vmcnt(0)")
    e.label("K0_xok")
    ln_wave(e, X=10, LN=10, T=20, S=26)
    e(f"""
    v_mul_u32_u24 v6, 2304, v5
    v_lshl_add_u32 v7, v1, 2, v6
    """)
    for i in range(9):
        e(f"ds_write_b32 v7, v{10+i} offset:{i*256}")
    e(f"""
    v_lshl_add_u32 v7, v4, 2, v6
    s_waitcnt lgkmcnt(0)
    """)
    for i in range(9):
        e(f"ds_read_b32 v{10+i}, v7 offset:{i*256}")
    for c in range(8):
        e(f"v_mov_b32 v{20+c}, 0")
    e("s_waitcnt vmcnt(0) lgkmcnt(0)")
    for i in range(9):
        for j in range(4):
            w = 32 + 4 * i + j
            e(f"v_lshlrev_b32 v28, 16, v{w}")
            e(f"v_and_b32 v29, 0xffff0000, v{w}")
            e(f"v_fmac_f32 v{20+2*j}, v{10+i}, v28")
            e(f"v_fmac_f32 v{21+2*j}, v{10+i}, v29")
    RED = 4 * 2304
    e(f"""
    v_lshlrev_b32 v7, 5, v0
    v_add_u32 v7, {RED}, v7
    ds_write_b128 v7, v[20:23]
    ds_write_b128 v7, v[24:27] offset:16
    s_waitcnt lgkmcnt(0)
    s_barrier
    v_readfirstlane_b32 s25, v5
    s_nop 3
    s_cmp_lg_u32 s25, 0
    s_cbranch_scc1 K0_end
    v_and_b32 v7, 31, v1
    v_lshlrev_b32 v8, 2, v7
    v_add_u32 v8, {RED}, v8
    """)
    for r in range(64):
        e(f"ds_read_b32 v{32+r}, v8 offset:{r*128}")
    e("s_waitcnt lgkmcnt(0)")
    n = 64
    while n > 1:
        h = n // 2
        for r in range(h):
            e(f"v_add_f32 v{32+r}, v{32+r}, v{32+r+h}")
        n = h
    e(f"""
    v_cvt_pk_bf16_f32 v32, v32, v32
    s_lshl_b32 s24, s2, 6
    v_lshlrev_b32 v8, 1, v7
    buffer_store_short v32, v8, s[20:23], s24 offen offset:{WS_Q}
    """)
    e.label("K0_end")
    e("s_endpgm")
    return name


def ln_wave(e, X, LN, T, S):
    for i in range(9):
        e(f"v_lshlrev_b32 v{X+i}, 16, v{X+i}")
    e(f"v_add_f32 v{T}, v{X}, v{X+1}")
    for i in range(2, 9):
        e(f"v_add_f32 v{T}, v{T}, v{X+i}")
    wave_reduce_to_sgpr(e, "v_add_f32", T, S)
    ln_mean(e, T, S)
    e(f"v_sub_f32 v{T+1}, v{X}, v{T}")
    e(f"v_mul_f32 v{T+2}, v{T+1}, v{T+1}")
    for i in range(1, 9):
        e(f"v_sub_f32 v{T+1}, v{X+i}, v{T}")
        e(f"v_fmac_f32 v{T+2}, v{T+1}, v{T+1}")
    wave_reduce_to_sgpr(e, "v_add_f32", T + 2, S)
    ln_finish_stats(e, T, S)
    for i in range(9):
        ln_apply(e, X + i, LN + i, T)


def ln_mean(e, T, S):
    e(f"""
    v_mov_b32 v{T+1}, s{S}
    v_mov_b32 v{T+2}, 0x44100000
    """)
    div_precise(e, T, T + 1, T + 2, T + 3, T + 4)


def ln_finish_stats(e, T, S):
    e(f"""
    v_mov_b32 v{T+2}, s{S}
    v_mov_b32 v{T+3}, 0x44100000
    """)
    div_precise(e, T + 1, T + 2, T + 3, T + 4, T + 5)
    rbf(e, T + 1, T + 1)
    e(f"v_add_f32 v{T+1}, 0x3727c5ac, v{T+1}")
    rbf(e, T + 1, T + 1)
    e(f"v_sqrt_f32 v{T+1}, v{T+1}")
    e("s_nop 0")
    rbf(e, T + 1, T + 1)
    rbf(e, T, T)


def ln_apply(e, x, dst, T):
    e(f"v_sub_f32 v{T+2}, v{x}, v{T}")
    rbf(e, T + 2, T + 2)
    div_precise(e, dst, T + 2, T + 1, T + 3, T + 4)
    rbf(e, dst, dst)


K1_WGS = 16 * NCH
K1_LDS = 98304
NB = KEYS_PER_WG // (4 * U)
Q_LDS = 67584
CNT_LDS = 68096


def gen_k1(e):
    name = "attn_kernel"
    kernel_header(e, name)
    Q = 2
    M = 10
    L = 12
    O = 14
    S = 30
    T = 40
    MX = 56
    AL = 58
    KB = [64, 96]
    VB = [80, 112]
    assert U == 4 and NW == 16 and NCH == 16
    lognch = NCH.bit_length() - 1
    BLKB = U * 1024
    e(f"""
    s_cmp_ge_u32 s2, {K1_WGS}
    s_cbranch_scc1 K1_end
    s_load_dwordx4 s[40:43], s[0:1], 0
    s_load_dwordx4 s[44:47], s[0:1], 16
    s_load_dwordx4 s[48:51], s[0:1], 88
    v_and_b32 v1, 63, v0
    v_lshrrev_b32 v60, 6, v0
    v_lshlrev_b32 v61, 4, v1
    v_readfirstlane_b32 s26, v60
    s_lshr_b32 s24, s2, {lognch}
    s_and_b32 s25, s2, {NCH-1}
    s_mov_b32 s29, {SCALE}
    s_mov_b32 s30, {LOG2E}
    s_waitcnt lgkmcnt(0)
    """)
    srd(e, 12, 42, 0x10000000)
    srd(e, 16, 44, 0x10000000)
    srd(e, 20, 50, WS_SIZE)
    e(f"""
    s_lshl_b32 s27, s2, {(KEYS_PER_WG*256).bit_length()-1}
    """)

    def loadK(buf, soff):
        for u in range(U):
            e(f"buffer_load_dwordx4 v[{KB[buf]+4*u}:{KB[buf]+4*u+3}], v61, s[12:15], s{soff} offen offset:{u*1024}{NT}")

    def loadV(buf, soff):
        for u in range(U):
            e(f"buffer_load_dwordx4 v[{VB[buf]+4*u}:{VB[buf]+4*u+3}], v61, s[16:19], s{soff} offen offset:{u*1024}{NT}")

    def blk_off(sidx, sdst):
        e(f"""
        s_mul_i32 s{sdst}, s{sidx}, {BLKB}
        s_add_u32 s{sdst}, s{sdst}, s27
        s_cmp_ge_u32 s{sidx}, {NB}
        s_cselect_b32 s{sdst}, 0x7fff0000, s{sdst}
        """)

    def grab_issue():
        e(f"""
        s_mov_b64 exec, 1
        ds_add_rtn_u32 v63, v62, v60
        s_mov_b64 exec, -1
        """)

    def grab_get(sdst):
        e(f"""
        s_waitcnt lgkmcnt(0)
        v_readfirstlane_b32 s{sdst}, v63
        """)

    e(f"""
    v_mov_b32 v62, {CNT_LDS}
    v_mov_b32 v60, 1
    s_cmp_eq_u32 s26, 0
    s_cbranch_scc1 K1_helper
    s_sub_u32 s32, s26, 1
    s_add_u32 s33, s26, {NW-2}
    """)
    blk_off(32, 34)
    blk_off(33, 35)
    loadK(0, 34)
    loadV(0, 34)
    loadK(1, 35)
    loadV(1, 35)
    e("s_barrier")
    e("s_branch K1_common")

    e.label("K1_helper")
    srd(e, 52, 40, 1152)
    srd(e, 56, 46, 576 * 8192)
    srd(e, 60, 48, 256)
    X = 30
    def WR(i):
        return 64 + 8 * i if i < 8 else 46
    e("v_lshlrev_b32 v40, 1, v1")
    for i in range(9):
        e(f"buffer_load_ushort v{X+i}, v40, s[52:55], 0 offen offset:{i*128}")
    e(f"""
    v_lshlrev_b32 v40, 13, v1
    s_lshl_b32 s32, s2, 5
    """)
    for i in range(9):
        e(f"buffer_load_dwordx4 v[{WR(i)}:{WR(i)+3}], v40, s[56:59], s32 offen")
        e(f"buffer_load_dwordx4 v[{WR(i)+4}:{WR(i)+7}], v40, s[56:59], s32 offen offset:16")
        if i < 8:
            e("s_add_u32 s32, s32, 0x80000")
    e(f"""
    s_cmp_lg_u32 s2, 0
    s_cbranch_scc1 K1_nozero
    v_mov_b32 v40, 0
    v_mov_b32 v41, 0
    v_mov_b32 v42, 0
    v_mov_b32 v43, 0
    s_mov_b32 s32, {WS_ACC1}
    """)
    for i in range(ACC_BYTES // 1024):
        if i and i % 4 == 0:
            e("s_add_u32 s32, s32, 4096")
        e(f"buffer_store_dwordx4 v[40:43], v61, s[20:23], s32 offen offset:{(i%4)*1024}")
    e("s_waitcnt vmcnt(0)")
    e.label("K1_nozero")
    e("s_waitcnt vmcnt(18)")
    ln_wave(e, X=X, LN=X, T=40, S=36)
    for c in range(16):
        e(f"v_mov_b32 v{O+c}, 0")
    e("s_waitcnt vmcnt(0)")
    for i in range(9):
        for j in range(8):
            w = WR(i) + j
            e(f"v_lshlrev_b32 v40, 16, v{w}")
            e(f"v_and_b32 v41, 0xffff0000, v{w}")
            e(f"v_fmac_f32 v{O+2*j}, v{X+i}, v40")
            e(f"v_fmac_f32 v{O+2*j+1}, v{X+i}, v41")
    e("s_nop 1")
    for c in range(8):
        e(f"v_permlane32_swap_b32 v{O+c}, v{O+c+8}")
    e("s_nop 1")
    for c in range(8):
        e(f"v_add_f32 v{O+c}, v{O+c}, v{O+c+8}")
    e("s_nop 1")
    for c in range(4):
        e(f"v_permlane16_swap_b32 v{O+c}, v{O+c+4}")
    e("s_nop 1")
    for c in range(4):
        e(f"v_add_f32 v{O+c}, v{O+c}, v{O+c+4}")
    for d in DPP_ROW:
        e("s_nop 1")
        for c in range(4):
            e(f"v_add_f32_dpp v{O+c}, v{O+c}, v{O+c} {d} row_mask:0xf bank_mask:0xf")
    e(f"""
    v_cvt_pk_bf16_f32 v40, v{O}, v{O+1}
    v_cvt_pk_bf16_f32 v41, v{O+2}, v{O+3}
    v_lshrrev_b32 v42, 4, v1
    v_lshlrev_b32 v42, 3, v42
    v_and_b32 v43, 15, v1
    s_lshl_b32 s32, s2, 5
    v_cmp_eq_u32 vcc, 0, v43
    s_and_saveexec_b64 s[38:39], vcc
    buffer_store_dwordx2 v[40:41], v42, s[20:23], s32 offen offset:{WS_Q} sc0 sc1
    s_waitcnt vmcnt(0)
    s_mov_b64 exec, 1
    s_lshl_b32 s32, s24, 4
    v_mov_b32 v42, 0
    buffer_atomic_add v60, v42, s[60:63], s32 offen
    s_mov_b32 s39, 0
    """)
    e.label("K1_poll")
    e(f"""
    buffer_load_dword v43, v42, s[60:63], s32 offen sc0 sc1
    s_waitcnt vmcnt(0)
    v_readfirstlane_b32 s33, v43
    s_add_u32 s39, s39, 1
    s_nop 3
    s_cmp_ge_u32 s33, {NCH}
    s_cbranch_scc1 K1_polldone
    s_cmp_ge_u32 s39, 0x400000
    s_cbranch_scc1 K1_polldone
    s_sleep 1
    s_branch K1_poll
    """)
    e.label("K1_polldone")
    e(f"""
    s_mov_b64 exec, -1
    s_lshl_b32 s32, s24, 9
    v_and_b32 v42, 31, v1
    v_lshlrev_b32 v42, 4, v42
    buffer_load_dwordx4 v[44:47], v42, s[20:23], s32 offen offset:{WS_Q} sc0 sc1
    v_add_u32 v42, {Q_LDS}, v42
    v_mov_b32 v43, {2*(NW-1)}
    s_waitcnt vmcnt(0)
    ds_write_b128 v42, v[44:47]
    ds_write_b32 v62, v43
    s_waitcnt lgkmcnt(0)
    s_barrier
    """)
    grab_issue()
    grab_get(32)
    grab_issue()
    grab_get(33)
    e("s_nop 3")
    blk_off(32, 34)
    blk_off(33, 35)
    loadK(0, 34)
    loadV(0, 34)
    loadK(1, 35)
    loadV(1, 35)

    e.label("K1_common")
    e(f"""
    v_and_b32 v40, 15, v1
    v_lshlrev_b32 v40, 4, v40
    v_add_u32 v40, {Q_LDS}, v40
    ds_read_b128 v[{Q}:{Q+3}], v40
    ds_read_b128 v[{Q+4}:{Q+7}], v40 offset:256
    v_mov_b32 v{M}, 0xff800000
    v_mov_b32 v{M+1}, 0xff800000
    v_mov_b32 v{L}, 0
    v_mov_b32 v{L+1}, 0
    """)
    for i in range(16):
        e(f"v_mov_b32 v{O+i}, 0")
    e("s_waitcnt lgkmcnt(0)")

    def scores(buf):
        kb = KB[buf]
        if NOCOMP:
            for u in range(U):
                e(f"v_or_b32 v{S}, v{S}, v{kb+4*u}")
            return
        for j in range(4):
            for u in range(U):
                for h in range(2):
                    if j == 0:
                        e(f"v_dot2_f32_bf16 v{S+2*u+h}, v{kb+4*u}, v{Q+4*h}, 0")
                    else:
                        e(f"v_dot2c_f32_bf16 v{S+2*u+h}, v{kb+4*u+j}, v{Q+4*h+j}")

    def softmax_part():
        if NOCOMP:
            return
        for c in DPP_ROW:
            for k in range(2 * U):
                e(f"v_add_f32_dpp v{S+k}, v{S+k}, v{S+k} {c} row_mask:0xf bank_mask:0xf")
        for u in range(U):
            e(f"v_cvt_pk_bf16_f32 v{T+u}, v{S+2*u}, v{S+2*u+1}")
        for u in range(U):
            e(f"v_lshlrev_b32 v{S+2*u}, 16, v{T+u}")
            e(f"v_and_b32 v{S+2*u+1}, 0xffff0000, v{T+u}")
        for k in range(2 * U):
            e(f"v_mul_f32 v{S+k}, s29, v{S+k}")
        for u in range(U):
            e(f"v_cvt_pk_bf16_f32 v{T+u}, v{S+2*u}, v{S+2*u+1}")
        for u in range(U):
            e(f"v_lshlrev_b32 v{S+2*u}, 16, v{T+u}")
            e(f"v_and_b32 v{S+2*u+1}, 0xffff0000, v{T+u}")
        for h in range(2):
            e(f"v_max3_f32 v{MX+h}, v{M+h}, v{S+h}, v{S+2+h}")
        for h in range(2):
            e(f"v_max3_f32 v{MX+h}, v{MX+h}, v{S+4+h}, v{S+6+h}")
        for h in range(2):
            e(f"v_sub_f32 v{AL+h}, v{M+h}, v{MX+h}")
        for k in range(2 * U):
            e(f"v_sub_f32 v{S+k}, v{S+k}, v{MX+(k&1)}")
        for h in range(2):
            e(f"v_mul_f32 v{AL+h}, s30, v{AL+h}")
        for k in range(2 * U):
            e(f"v_mul_f32 v{S+k}, s30, v{S+k}")
        for h in range(2):
            e(f"v_exp_f32 v{AL+h}, v{AL+h}")
        for k in range(2 * U):
            e(f"v_exp_f32 v{S+k}, v{S+k}")
        for h in range(2):
            e(f"v_mov_b32 v{M+h}, v{MX+h}")
        for h in range(2):
            e(f"v_mul_f32 v{L+h}, v{L+h}, v{AL+h}")
        for h in range(2):
            for i in range(8):
                e(f"v_mul_f32 v{O+8*h+i}, v{O+8*h+i}, v{AL+h}")
        for u in range(U):
            for h in range(2):
                e(f"v_add_f32 v{L+h}, v{L+h}, v{S+2*u+h}")

    def pv(buf):
        vb = VB[buf]
        if NOCOMP:
            for u in range(U):
                e(f"v_or_b32 v{S}, v{S}, v{vb+4*u}")
            return
        for u in range(U):
            t = T + 8 * (u & 1)
            for j in range(4):
                e(f"v_lshlrev_b32 v{t+2*j}, 16, v{vb+4*u+j}")
                e(f"v_and_b32 v{t+2*j+1}, 0xffff0000, v{vb+4*u+j}")
            for h in range(2):
                for i in range(8):
                    e(f"v_fmac_f32 v{O+8*h+i}, v{S+2*u+h}, v{t+i}")

    e.label("K1_loop")
    for buf in range(2):
        si = 32 + buf
        e(f"""
        s_cmp_ge_u32 s{si}, {NB}
        s_cbranch_scc1 K1_done
        """)
        grab_issue()
        e("s_waitcnt vmcnt(12)")
        scores(buf)
        grab_get(si)
        e("s_nop 3")
        blk_off(si, 34)
        loadK(buf, 34)
        softmax_part()
        e("s_waitcnt vmcnt(12)")
        pv(buf)
        loadV(buf, 34)
    e("s_branch K1_loop")
    e.label("K1_done")

    MB = 65536
    e(f"""
    v_lshrrev_b32 v40, 4, v0
    v_and_b32 v41, 15, v1
    v_lshlrev_b32 v42, 10, v40
    v_lshl_add_u32 v42, v41, 5, v42
    ds_write_b128 v42, v[{O}:{O+3}]
    ds_write_b128 v42, v[{O+4}:{O+7}] offset:16
    ds_write_b128 v42, v[{O+8}:{O+11}] offset:512
    ds_write_b128 v42, v[{O+12}:{O+15}] offset:528
    v_lshlrev_b32 v43, 2, v40
    v_add_u32 v43, {MB}, v43
    ds_write_b32 v43, v{M}
    ds_write_b32 v43, v{M+1} offset:256
    ds_write_b32 v43, v{L} offset:512
    ds_write_b32 v43, v{L+1} offset:768
    s_waitcnt vmcnt(0) lgkmcnt(0)
    s_barrier
    s_cmp_ge_u32 s26, 4
    s_cbranch_scc1 K1_end
    s_lshr_b32 s31, s26, 1
    s_and_b32 s32, s26, 1
    s_lshl_b32 s33, s31, 8
    v_lshlrev_b32 v43, 2, v1
    v_add_u32 v43, s33, v43
    v_add_u32 v43, {MB}, v43
    ds_read_b32 v44, v43
    ds_read_b32 v45, v43 offset:512
    s_lshl_b32 s33, s31, 9
    s_lshl_b32 s34, s32, 8
    s_add_u32 s33, s33, s34
    v_lshlrev_b32 v46, 2, v1
    v_add_u32 v46, s33, v46
    """)
    for g in range(64):
        e(f"ds_read_b32 v{64+g}, v46 offset:{g*1024}")
    e("s_waitcnt lgkmcnt(0)")
    e("v_mov_b32 v47, v44")
    wave_reduce_to_sgpr(e, "v_max_f32", 47, 36)
    e(f"""
    v_subrev_f32 v47, s36, v44
    v_mul_f32 v47, s30, v47
    v_exp_f32 v47, v47
    s_nop 0
    v_mul_f32 v48, v47, v45
    """)
    wave_reduce_to_sgpr(e, "v_add_f32", 48, 37)
    e("v_mov_b32 v49, 0")
    for g in range(64):
        e(f"v_readlane_b32 s{40+(g&7)}, v47, {g}")
        if (g & 7) == 7:
            e("s_nop 1")
            for k in range(8):
                e(f"v_fmac_f32 v49, s{40+k}, v{64+g-7+k}")
    e(f"""
    s_lshl_b32 s33, s24, 1
    s_add_u32 s33, s33, s31
    s_lshl_b32 s33, s33, {lognch}
    s_add_u32 s33, s33, s25
    s_lshl_b32 s34, s33, 9
    s_lshl_b32 s35, s32, 8
    s_add_u32 s34, s34, s35
    s_add_u32 s34, s34, {WS_O}
    v_lshlrev_b32 v46, 2, v1
    buffer_store_dword v49, v46, s[20:23], s34 offen
    s_cmp_lg_u32 s32, 0
    s_cbranch_scc1 K1_end
    s_lshl_b32 s34, s33, 3
    s_add_u32 s34, s34, {WS_ML}
    v_mov_b32 v50, s36
    v_mov_b32 v51, s37
    v_mov_b32 v46, 0
    v_cmp_eq_u32 vcc, 0, v1
    s_and_saveexec_b64 s[38:39], vcc
    buffer_store_dwordx2 v[50:51], v46, s[20:23], s34 offen
    """)
    e.label("K1_end")
    e("s_endpgm")
    return name


K2_WGS = 288
K2_LDS = 512 + 8192


def gen_k2(e):
    name = "oproj_kernel"
    kernel_header(e, name)
    e(f"""
    s_cmp_ge_u32 s2, {K2_WGS}
    s_cbranch_scc1 K2_end
    s_load_dwordx2 s[4:5], s[0:1], 32
    s_load_dwordx2 s[8:9], s[0:1], 96
    s_mov_b32 s30, {LOG2E}
    s_mov_b32 s3, 0x1c71c71d
    s_mul_hi_u32 s24, s2, s3
    s_mul_i32 s25, s24, 9
    s_sub_u32 s25, s2, s25
    v_and_b32 v1, 63, v0
    v_lshrrev_b32 v2, 6, v0
    v_and_b32 v3, 7, v0
    v_lshrrev_b32 v4, 3, v0
    v_readfirstlane_b32 s26, v2
    s_waitcnt lgkmcnt(0)
    """)
    srd(e, 12, 4, 4096 * 1152)
    srd(e, 20, 8, WS_SIZE)
    e(f"""
    v_mul_u32_u24 v5, 1152, v4
    v_lshl_add_u32 v5, v3, 4, v5
    s_mul_i32 s27, s24, {128*1152}
    s_lshl_b32 s28, s25, 7
    s_add_u32 s27, s27, s28
    """)
    for i in range(4):
        e(f"buffer_load_dwordx4 v[{32+4*i}:{35+4*i}], v5, s[12:15], s27 offen")
        if i < 3:
            e(f"s_add_u32 s27, s27, {32*1152}")
    e(f"""
    s_cmp_ge_u32 s26, 2
    s_cbranch_scc1 K2_skipcomb
    s_lshl_b32 s27, s24, 7
    s_add_u32 s27, s27, {WS_ML}
    v_and_b32 v6, 15, v1
    v_lshlrev_b32 v6, 3, v6
    buffer_load_dwordx2 v[8:9], v6, s[20:23], s27 offen
    s_lshl_b32 s27, s24, 13
    s_add_u32 s27, s27, {WS_O}
    v_lshlrev_b32 v7, 2, v0
    """)
    for c in range(16):
        if c == 8:
            e("s_add_u32 s27, s27, 4096")
        e(f"buffer_load_dword v{48+c}, v7, s[20:23], s27 offen offset:{(c&7)*512}")
    e(f"""
    s_waitcnt vmcnt(16)
    v_mov_b32 v10, v8
    """)
    row_allreduce(e, "v_max_f32", 10)
    e(f"""
    v_sub_f32 v10, v8, v10
    v_mul_f32 v10, s30, v10
    v_exp_f32 v10, v10
    s_nop 0
    v_mul_f32 v11, v10, v9
    """)
    row_allreduce(e, "v_add_f32", 11)
    e("s_waitcnt vmcnt(0)")
    e("v_mov_b32 v12, 0")
    for c in range(16):
        e(f"v_readlane_b32 s{40+c}, v10, {c}")
    e("s_nop 1")
    for c in range(16):
        e(f"v_fmac_f32 v12, s{40+c}, v{48+c}")
    div_precise(e, 13, 12, 11, 14, 15)
    rbf(e, 13, 13)
    e(f"""
    ds_write_b32 v7, v13
    """)
    e.label("K2_skipcomb")
    e(f"""
    s_waitcnt lgkmcnt(0)
    s_barrier
    v_lshlrev_b32 v6, 2, v4
    ds_read_b32 v16, v6
    ds_read_b32 v17, v6 offset:128
    ds_read_b32 v18, v6 offset:256
    ds_read_b32 v19, v6 offset:384
    """)
    for c in range(8):
        e(f"v_mov_b32 v{20+c}, 0")
    e("s_waitcnt vmcnt(0) lgkmcnt(0)")
    for i in range(4):
        for j in range(4):
            w = 32 + 4 * i + j
            e(f"v_lshlrev_b32 v28, 16, v{w}")
            e(f"v_and_b32 v29, 0xffff0000, v{w}")
            e(f"v_fmac_f32 v{20+2*j}, v{16+i}, v28")
            e(f"v_fmac_f32 v{21+2*j}, v{16+i}, v29")
    e(f"""
    v_lshlrev_b32 v6, 5, v0
    ds_write_b128 v6, v[20:23] offset:512
    ds_write_b128 v6, v[24:27] offset:528
    s_waitcnt lgkmcnt(0)
    s_barrier
    s_cmp_lg_u32 s26, 0
    s_cbranch_scc1 K2_end
    v_lshlrev_b32 v6, 2, v1
    """)
    for r in range(32):
        e(f"ds_read_b32 v{32+r}, v6 offset:{512+r*256}")
    e("s_waitcnt lgkmcnt(0)")
    n = 32
    while n > 1:
        h = n // 2
        for r in range(h):
            e(f"v_add_f32 v{32+r}, v{32+r}, v{32+r+h}")
        n = h
    e(f"""
    s_lshl_b32 s27, s25, 8
    s_add_u32 s27, s27, {WS_ACC1}
    s_and_b32 s28, s24, {NREP1-1}
    s_mul_i32 s28, s28, 2304
    s_add_u32 s27, s27, s28
    buffer_atomic_add_f32 v32, v6, s[20:23], s27 offen
    """)
    e.label("K2_end")
    e("s_endpgm")
    return name


K3_WGS = 144
K3_LDS = 32768


def gen_k3(e):
    name = "ffn_kernel"
    kernel_header(e, name)
    L_RED = 0
    L_LN = 256
    L_H1 = 2560
    L_P2 = 2688
    L_FLAG = 4992
    L_BIG = 8192
    e(f"""
    s_cmp_ge_u32 s2, {K3_WGS}
    s_cbranch_scc1 K3_end
    s_load_dwordx2 s[4:5], s[0:1], 0
    s_load_dwordx4 s[48:51], s[0:1], 48
    s_load_dwordx4 s[52:55], s[0:1], 64
    s_load_dwordx4 s[56:59], s[0:1], 80
    s_load_dwordx2 s[8:9], s[0:1], 96
    v_and_b32 v1, 63, v0
    v_lshrrev_b32 v2, 6, v0
    v_and_b32 v3, 3, v0
    v_lshrrev_b32 v4, 2, v0
    v_readfirstlane_b32 s26, v2
    s_waitcnt lgkmcnt(0)
    """)
    srd(e, 12, 4, 1152)
    srd(e, 16, 48, 576 * 9216)
    srd(e, 20, 8, WS_SIZE)
    srd(e, 60, 50, 9216)
    srd(e, 64, 52, 4608 * 1152)
    srd(e, 68, 54, 1152)
    srd(e, 72, 56, 1152)
    srd(e, 76, 58, 256)
    e(f"""
    v_lshlrev_b32 v5, 1, v0
    v_lshlrev_b32 v6, 2, v0
    buffer_load_ushort v10, v5, s[12:15], 0 offen
    buffer_load_dword v11, v6, s[20:23], 0 offen offset:{0}
    """.replace("offset:0", ""))
    e.l.pop()
    e(f"""
    s_mov_b32 s27, {WS_ACC1}
    buffer_load_dword v11, v6, s[20:23], s27 offen
    buffer_load_dword v14, v6, s[20:23], s27 offen offset:2304
    s_mov_b32 s27, {WS_ACC1+4608}
    buffer_load_dword v15, v6, s[20:23], s27 offen
    buffer_load_dword v16, v6, s[20:23], s27 offen offset:2304
    buffer_load_ushort v12, v5, s[68:71], 0 offen
    v_and_b32 v7, 31, v0
    v_lshlrev_b32 v7, 1, v7
    s_lshl_b32 s27, s2, 6
    buffer_load_ushort v13, v7, s[60:63], s27 offen
    s_mov_b32 s28, 9216
    v_mul_lo_u32 v8, v4, s28
    v_lshl_add_u32 v8, v3, 4, v8
    """)
    for i in range(4):
        e(f"buffer_load_dwordx4 v[{32+4*i}:{35+4*i}], v8, s[16:19], s27 offen")
        if i < 3:
            e(f"s_add_u32 s27, s27, {144*9216}")
    e(f"""
    s_mul_i32 s27, s2, 36864
    v_lshlrev_b32 v9, 4, v0
    """)
    for i in range(4):
        e(f"buffer_load_dwordx4 v[{48+4*i}:{51+4*i}], v9, s[64:67], s27 offen")
        if i < 3:
            e(f"s_add_u32 s27, s27, {576*16}")
    e("s_waitcnt vmcnt(10)")
    e("v_lshlrev_b32 v10, 16, v10")
    e("v_add_f32 v11, v11, v14")
    e("v_add_f32 v15, v15, v16")
    e("v_add_f32 v11, v11, v15")
    rbf(e, 11, 11)
    e("v_add_f32 v10, v10, v11")
    rbf(e, 10, 10)
    e("v_mov_b32 v20, v10")
    wave_reduce_to_sgpr(e, "v_add_f32", 20, 30)
    e(f"""
    v_mov_b32 v20, s30
    v_lshlrev_b32 v21, 2, v2
    ds_write_b32 v21, v20 offset:{L_RED}
    s_waitcnt lgkmcnt(0)
    s_barrier
    v_mov_b32 v21, 0
    """)
    for w in range(9):
        e(f"ds_read_b32 v{64+w}, v21 offset:{L_RED+4*w}")
    e("s_waitcnt lgkmcnt(0)")
    for w in range(1, 9):
        e(f"v_add_f32 v64, v64, v{64+w}")
    e(f"""
    v_mov_b32 v21, v64
    v_mov_b32 v22, 0x44100000
    """)
    div_precise(e, 20, 21, 22, 23, 24)
    e(f"""
    v_sub_f32 v21, v10, v20
    v_mul_f32 v21, v21, v21
    """)
    wave_reduce_to_sgpr(e, "v_add_f32", 21, 30)
    e(f"""
    v_mov_b32 v22, s30
    v_lshlrev_b32 v21, 2, v2
    ds_write_b32 v21, v22 offset:{L_RED+64}
    s_waitcnt lgkmcnt(0)
    s_barrier
    v_mov_b32 v21, 0
    """)
    for w in range(9):
        e(f"ds_read_b32 v{64+w}, v21 offset:{L_RED+64+4*w}")
    e("s_waitcnt lgkmcnt(0)")
    for w in range(1, 9):
        e(f"v_add_f32 v64, v64, v{64+w}")
    e(f"""
    v_mov_b32 v22, v64
    v_mov_b32 v23, 0x44100000
    """)
    div_precise(e, 21, 22, 23, 24, 25)
    rbf(e, 21, 21)
    e("v_add_f32 v21, 0x3727c5ac, v21")
    rbf(e, 21, 21)
    e("v_sqrt_f32 v21, v21")
    e("s_nop 0")
    rbf(e, 21, 21)
    rbf(e, 20, 20)
    ln_apply(e, 10, 26, 20)
    e(f"""
    ds_write_b32 v6, v26 offset:{L_LN}
    s_waitcnt lgkmcnt(0)
    s_barrier
    v_lshlrev_b32 v21, 2, v4
    ds_read_b32 v16, v21 offset:{L_LN}
    ds_read_b32 v17, v21 offset:{L_LN+576}
    ds_read_b32 v18, v21 offset:{L_LN+1152}
    ds_read_b32 v19, v21 offset:{L_LN+1728}
    """)
    for c in range(8):
        e(f"v_mov_b32 v{20+c}, 0")
    e("s_waitcnt vmcnt(4) lgkmcnt(0)")
    for i in range(4):
        for j in range(4):
            w = 32 + 4 * i + j
            e(f"v_lshlrev_b32 v28, 16, v{w}")
            e(f"v_and_b32 v29, 0xffff0000, v{w}")
            e(f"v_fmac_f32 v{20+2*j}, v{16+i}, v28")
            e(f"v_fmac_f32 v{21+2*j}, v{16+i}, v29")
    e(f"""
    v_lshlrev_b32 v30, 5, v0
    v_add_u32 v30, {L_BIG}, v30
    ds_write_b128 v30, v[20:23]
    ds_write_b128 v30, v[24:27] offset:16
    s_waitcnt lgkmcnt(0)
    s_barrier
    v_and_b32 v30, 31, v0
    v_lshrrev_b32 v31, 5, v0
    v_lshlrev_b32 v31, 10, v31
    v_lshl_add_u32 v30, v30, 2, v31
    v_add_u32 v30, {L_BIG}, v30
    """)
    for r in range(8):
        e(f"ds_read_b32 v{20+r}, v30 offset:{r*128}")
    e("s_waitcnt lgkmcnt(0)")
    for r in range(1, 8):
        e(f"v_add_f32 v20, v20, v{20+r}")
    e(f"""
    ds_write_b32 v6, v20 offset:{L_P2}
    s_waitcnt lgkmcnt(0)
    s_barrier
    s_cmp_lg_u32 s26, 0
    s_cbranch_scc1 K3_skiph1
    v_and_b32 v30, 31, v0
    v_lshlrev_b32 v30, 2, v30
    """)
    for r in range(18):
        e(f"ds_read_b32 v{64+r}, v30 offset:{L_P2+r*128}")
    e("s_waitcnt lgkmcnt(0)")
    for r in range(1, 18):
        e(f"v_add_f32 v64, v64, v{64+r}")
    rbf(e, 64, 64)
    e("v_lshlrev_b32 v13, 16, v13")
    e("v_add_f32 v64, v64, v13")
    rbf(e, 64, 64)
    e("v_max_f32 v64, 0, v64")
    e("v_mul_f32 v64, v64, v64")
    rbf(e, 64, 64)
    e(f"ds_write_b32 v30, v64 offset:{L_H1}")
    e.label("K3_skiph1")
    e(f"""
    s_waitcnt lgkmcnt(0)
    s_barrier
    s_mov_b32 s28, 0x38e38e4
    v_mul_hi_u32 v30, v0, s28
    v_lshlrev_b32 v31, 2, v30
    ds_read_b32 v16, v31 offset:{L_H1}
    ds_read_b32 v17, v31 offset:{L_H1+32}
    ds_read_b32 v18, v31 offset:{L_H1+64}
    ds_read_b32 v19, v31 offset:{L_H1+96}
    """)
    for c in range(8):
        e(f"v_mov_b32 v{20+c}, 0")
    e("s_waitcnt vmcnt(0) lgkmcnt(0)")
    for i in range(4):
        for j in range(4):
            w = 48 + 4 * i + j
            e(f"v_lshlrev_b32 v28, 16, v{w}")
            e(f"v_and_b32 v29, 0xffff0000, v{w}")
            e(f"v_fmac_f32 v{20+2*j}, v{16+i}, v28")
            e(f"v_fmac_f32 v{21+2*j}, v{16+i}, v29")
    e(f"""
    v_lshlrev_b32 v30, 5, v0
    v_add_u32 v30, {L_BIG}, v30
    ds_write_b128 v30, v[20:23]
    ds_write_b128 v30, v[24:27] offset:16
    s_waitcnt lgkmcnt(0)
    s_barrier
    v_add_u32 v30, {L_BIG}, v6
    """)
    for r in range(8):
        e(f"ds_read_b32 v{20+r}, v30 offset:{r*2304}")
    e("s_waitcnt lgkmcnt(0)")
    for r in range(1, 8):
        e(f"v_add_f32 v20, v20, v{20+r}")
    e(f"""
    s_and_b32 s27, s2, {NREP2-1}
    s_mul_i32 s27, s27, 2304
    s_add_u32 s27, s27, {WS_ACC2}
    buffer_atomic_add_f32 v20, v6, s[20:23], s27 offen
    s_waitcnt vmcnt(0)
    s_barrier
    s_cmp_lg_u32 s26, 0
    s_cbranch_scc1 K3_skipcnt
    v_mov_b32 v21, 1
    v_mov_b32 v22, 0
    v_cmp_eq_u32 vcc, 0, v1
    s_and_saveexec_b64 s[38:39], vcc
    buffer_atomic_add v21, v22, s[76:79], 0 offen sc0
    s_waitcnt vmcnt(0)
    ds_write_b32 v22, v21 offset:{L_FLAG}
    s_mov_b64 exec, s[38:39]
    """)
    e.label("K3_skipcnt")
    e(f"""
    s_waitcnt lgkmcnt(0)
    s_barrier
    v_mov_b32 v22, 0
    ds_read_b32 v21, v22 offset:{L_FLAG}
    s_waitcnt lgkmcnt(0)
    s_nop 0
    v_readfirstlane_b32 s28, v21
    s_nop 3
    s_cmp_lg_u32 s28, {K3_WGS-1}
    s_cbranch_scc1 K3_end
    s_mov_b32 s27, {WS_ACC2}
    """)
    for r in range(NREP2):
        e(f"v_mov_b32 v{32+r}, 0")
    for r in range(NREP2):
        e(f"buffer_atomic_add_f32 v{32+r}, v6, s[20:23], s27 offen sc0")
        e("s_add_u32 s27, s27, 2304")
    e("s_waitcnt vmcnt(0)")
    n = NREP2
    while n > 1:
        hh = n // 2
        for r in range(hh):
            e(f"v_add_f32 v{32+r}, v{32+r}, v{32+r+hh}")
        n = hh
    e("v_mov_b32 v20, v32")
    rbf(e, 20, 20)
    e("v_lshlrev_b32 v12, 16, v12")
    e("v_add_f32 v20, v20, v12")
    rbf(e, 20, 20)
    e("v_add_f32 v20, v20, v10")
    e("v_cvt_pk_bf16_f32 v20, v20, v20")
    e("buffer_store_short v20, v5, s[72:75], 0 offen")
    e.label("K3_end")
    e("s_endpgm")
    return name


def main():
    ref = open(f"cdna_kernels/{NAME}.s.ref").read().split("\n")
    head = [l for l in ref if l.startswith(";") and "@launch" not in l and "Override launch" not in l and "grid=ceil" not in l]
    out = list(head)
    out.append(f"; @launch kernel=attn_kernel grid=({K1_WGS},1,1) block=({NW*64},1,1) lds={K1_LDS}")
    out.append(f"; @launch kernel=oproj_kernel grid=({K2_WGS},1,1) block=(256,1,1) lds={K2_LDS}")
    out.append(f"; @launch kernel=ffn_kernel grid=({K3_WGS},1,1) block=(576,1,1) lds={K3_LDS}")
    out.append('.amdgcn_target "amdgcn-amd-amdhsa--gfx950"')
    out.append(".text")
    e = E()
    gen_k1(e)
    gen_k2(e)
    gen_k3(e)
    s = "\n".join(out) + "\n" + e.text()
    s += '.section .rodata,"a"\n.p2align 6\n'
    s += kernel_desc("attn_kernel", 128)
    s += ".p2align 6\n" + kernel_desc("oproj_kernel", 64)
    s += ".p2align 6\n" + kernel_desc("ffn_kernel", 84)
    open(OUT, "w").write(s)
    print("wrote", OUT, len(s))


if __name__ == "__main__":
    main()
```

```python
import sys, re, os
sys.path.insert(0, os.path.dirname(os.path.abspath(__file__)))
from gen import (E, srd, rbf, DPP_ROW, row_allreduce, wave_reduce_to_sgpr, div_precise, kernel_header,
                 kernel_desc, ln_wave, ln_mean, ln_finish_stats, ln_apply, NAME, LOG2E, SCALE)

OUT = os.environ.get("OUT", f"cdna_kernels/{NAME}.s")
DIAG = int(os.environ.get("DIAG", "0"))
MAP = int(os.environ.get("MAP", "1"))
NREP1 = int(os.environ.get("NREP1", "8"))
NREP2 = int(os.environ.get("NREP2", "8"))
NT = " nt"

WS_ML = 0
WS_CNT = 8192
WS_C1 = WS_CNT
WS_C2 = WS_CNT + 4096
WS_C3 = WS_CNT + 8192
WS_ACC1 = WS_CNT + 12288
WS_ACC2 = WS_ACC1 + NREP1 * 2304
ZERO_BYTES = (12288 + (NREP1 + NREP2) * 2304 + 1023) // 1024 * 1024
WS_O = 131072
assert WS_CNT + ZERO_BYTES <= WS_O
WS_DIAG = 1 << 20
WS_SIZE = 0x40000000

L_WO = 0
L_W2 = 18432
L_W1 = L_W2 + 21504
L_QACC = L_W1 + 20736
L_LNB = L_QACC + 1024
L_H = L_LNB + 1152
L_H1 = L_H + 2304
L_CMB = 65536
L_MB = L_CMB + 65536
LDS_BYTES = L_MB + 1024

NWG = 256
U = 4
NBW = 16
POLL_MAX = 0x200000


def gen(e):
    name = "fused_kernel"
    kernel_header(e, name)
    Q = 2
    M = 10
    L = 12
    O = 14
    S = 30
    VO = 38
    T = 40
    MX = 56
    AL = 58
    KB = [112, 80]
    VB = [96, 64]
    ndiag = [0]

    def stamp():
        if not DIAG:
            return
        k = ndiag[0]
        ndiag[0] += 1
        e(f"""
        s_memrealtime s[8:9]
        s_waitcnt lgkmcnt(0)
        v_writelane_b32 v39, s8, {k}
        """)

    e(f"""
    s_cmp_ge_u32 s2, {NWG}
    s_cbranch_scc1 K_end
    s_load_dwordx4 s[40:43], s[0:1], 0
    s_load_dwordx4 s[44:47], s[0:1], 16
    s_load_dwordx2 s[48:49], s[0:1], 32
    s_load_dwordx4 s[52:55], s[0:1], 48
    s_load_dwordx4 s[56:59], s[0:1], 64
    s_load_dwordx4 s[60:63], s[0:1], 80
    s_load_dwordx2 s[64:65], s[0:1], 96
    v_and_b32 v1, 63, v0
    v_lshrrev_b32 v39, 6, v0
    v_lshlrev_b32 v{VO}, 4, v1
    v_readfirstlane_b32 s26, v39
    s_mov_b32 s29, {SCALE}
    s_mov_b32 s30, {LOG2E}
    """)
    if MAP:
        e(f"""
        s_and_b32 s3, s2, 7
        s_lshr_b32 s4, s2, 3
        s_and_b32 s24, s4, 1
        s_lshl_b32 s5, s3, 1
        s_add_u32 s24, s24, s5
        s_lshr_b32 s25, s4, 1
        s_lshl_b32 s28, s3, 5
        s_add_u32 s28, s28, s4
        """)
    else:
        e(f"""
        s_lshr_b32 s24, s2, 4
        s_and_b32 s25, s2, 15
        s_mov_b32 s28, s2
        """)
    e(f"""
    s_lshl_b32 s27, s24, 4
    s_add_u32 s27, s27, s25
    s_lshl_b32 s27, s27, 20
    s_lshl_b32 s3, s26, 12
    s_add_u32 s27, s27, s3
    s_waitcnt lgkmcnt(0)
    """)
    if DIAG:
        e("v_mov_b32 v39, 0")
    stamp()
    srd(e, 12, 42, 0x10000000)
    srd(e, 16, 44, 0x10000000)
    srd(e, 20, 64, WS_SIZE)
    srd(e, 68, 40, 1152)
    srd(e, 72, 46, 576 * 8192)
    srd(e, 76, 48, 4096 * 1152)
    srd(e, 80, 52, 576 * 9216)
    srd(e, 84, 56, 4608 * 1152)
    srd(e, 88, 54, 9216)
    srd(e, 92, 58, 1152)
    srd(e, 96, 60, 1152)
    srd(e, 4, 62, 256)

    e(f"""
    s_cmp_lg_u32 s2, 0
    s_cbranch_scc1 K_noinit
    s_cmp_lg_u32 s26, 15
    s_cbranch_scc1 K_noinit
    v_mov_b32 v40, 0
    v_mov_b32 v41, 0
    v_mov_b32 v42, 0
    v_mov_b32 v43, 0
    s_mov_b32 s32, {WS_CNT}
    """)
    for i in range(ZERO_BYTES // 1024):
        if i and i % 4 == 0:
            e("s_add_u32 s32, s32, 4096")
        e(f"buffer_store_dwordx4 v[40:43], v{VO}, s[20:23], s32 offen offset:{(i%4)*1024} sc0 sc1")
    e(f"""
    s_waitcnt vmcnt(0)
    v_mov_b32 v41, 1
    s_mov_b64 exec, 1
    buffer_store_dword v41, v40, s[4:7], 0 offen sc0 sc1
    s_mov_b64 exec, -1
    """)
    e.label("K_noinit")

    X = 14
    e(f"""
    s_cmp_lg_u32 s26, 0
    s_cbranch_scc1 K_nox
    v_lshlrev_b32 v31, 1, v1
    """)
    for i in range(9):
        e(f"buffer_load_ushort v{X+i}, v31, s[68:71], 0 offen offset:{i*128}")
    e.label("K_nox")

    e(f"""
    s_lshl_b32 s32, s24, 4
    s_add_u32 s32, s32, s25
    s_mul_i32 s32, s32, {16*1152}
    s_lshl_b32 s33, s26, 10
    s_add_u32 s32, s32, s33
    s_add_u32 s34, s33, {L_WO}
    s_mov_b32 m0, s34
    s_nop 0
    buffer_load_dwordx4 v{VO}, s[76:79], s32 offen lds
    s_cmp_ge_u32 s26, 2
    s_cbranch_scc1 K_wo_done
    s_add_u32 s32, s32, 16384
    s_add_u32 s34, s34, 16384
    s_mov_b32 m0, s34
    s_nop 0
    buffer_load_dwordx4 v{VO}, s[76:79], s32 offen lds
    """)
    e.label("K_wo_done")
    e(f"""
    s_mul_i32 s32, s28, 20736
    s_add_u32 s32, s32, s33
    s_add_u32 s34, s33, {L_W2}
    s_mov_b32 m0, s34
    s_nop 0
    buffer_load_dwordx4 v{VO}, s[84:87], s32 offen lds
    s_cmp_ge_u32 s26, 5
    s_cbranch_scc1 K_w2_done
    s_add_u32 s32, s32, 16384
    s_add_u32 s34, s34, 16384
    s_mov_b32 m0, s34
    s_nop 0
    buffer_load_dwordx4 v{VO}, s[84:87], s32 offen lds
    """)
    e.label("K_w2_done")
    e(f"""
    s_mul_i32 s32, s28, 36
    s_lshl_b32 s33, s26, 8
    s_add_u32 s34, s33, {L_W1}
    s_movk_i32 s35, 9216
    """)
    for k in range(6):
        if k == 5:
            e("s_cmp_lg_u32 s26, 0")
            e("s_cbranch_scc1 K_w1_done")
        e(f"""
        v_add_u32 v31, {k*1024}, v0
        v_mul_u32_u24 v32, 7282, v31
        v_lshrrev_b32 v32, 16, v32
        v_mul_u32_u24 v33, 9, v32
        v_sub_u32 v33, v31, v33
        v_mul_u32_u24 v32, s35, v32
        v_lshl_add_u32 v32, v33, 2, v32
        s_mov_b32 m0, s34
        s_add_u32 s34, s34, 4096
        buffer_load_dword v32, s[80:83], s32 offen lds
        """)
    e.label("K_w1_done")

    WQ = 40
    e(f"""
    v_and_b32 v34, 31, v1
    v_lshlrev_b32 v34, 4, v34
    v_lshrrev_b32 v35, 5, v1
    v_mul_u32_u24 v35, {18*8192}, v35
    v_add_u32 v34, v34, v35
    s_mul_i32 s32, s26, {36*8192}
    s_lshl_b32 s33, s24, 9
    s_add_u32 s32, s32, s33
    """)
    for i in range(18):
        e(f"buffer_load_dwordx4 v[{WQ+4*i}:{WQ+4*i+3}], v34, s[72:75], s32 offen")
        if i < 17:
            e("s_add_u32 s32, s32, 8192")

    def loadK(buf, soff):
        for u in range(U):
            e(f"buffer_load_dwordx4 v[{KB[buf]+4*u}:{KB[buf]+4*u+3}], v{VO}, s[12:15], s{soff} offen offset:{u*1024}{NT}")

    def loadV(buf, soff):
        for u in range(U):
            e(f"buffer_load_dwordx4 v[{VB[buf]+4*u}:{VB[buf]+4*u+3}], v{VO}, s[16:19], s{soff} offen offset:{u*1024}{NT}")

    loadK(0, 27)

    e(f"""
    s_cmp_lg_u32 s26, 0
    s_cbranch_scc1 K_noln
    v_mov_b32 v30, 0
    v_mov_b32 v31, 0
    v_mov_b32 v32, 0
    v_mov_b32 v33, 0
    v_add_u32 v35, {L_QACC}, v{VO}
    ds_write_b128 v35, v[30:33]
    s_waitcnt vmcnt(32)
    """)
    ln_wave(e, X=X, LN=X, T=23, S=36)
    e(f"""
    v_lshlrev_b32 v35, 1, v1
    v_add_u32 v35, {L_LNB}, v35
    """)
    for i in range(9):
        e(f"ds_write_b16_d16_hi v35, v{X+i} offset:{i*128}")
    e.label("K_noln")
    e(f"""
    s_waitcnt lgkmcnt(0)
    s_barrier
    """)
    stamp()
    LP = 22
    e(f"""
    v_lshrrev_b32 v35, 5, v1
    v_mul_u32_u24 v35, 36, v35
    s_mul_i32 s32, s26, 72
    s_add_u32 s32, s32, {L_LNB}
    v_add_u32 v35, s32, v35
    """)
    for k in range(9):
        e(f"ds_read_b32 v{LP+k}, v35 offset:{4*k}")
    for c in range(8):
        e(f"v_mov_b32 v{O+c}, 0")
    e(f"""
    s_mov_b32 s32, 0x05040100
    s_mov_b32 s33, 0x07060302
    s_waitcnt vmcnt(4) lgkmcnt(0)
    """)
    for k in range(9):
        for c in range(4):
            a = WQ + 4 * (2 * k) + c
            b = WQ + 4 * (2 * k + 1) + c
            t0 = 31 + 2 * (c & 1)
            e(f"v_perm_b32 v{t0}, v{b}, v{a}, s32")
            e(f"v_perm_b32 v{t0+1}, v{b}, v{a}, s33")
            e(f"v_dot2c_f32_bf16 v{O+2*c}, v{t0}, v{LP+k}")
            e(f"v_dot2c_f32_bf16 v{O+2*c+1}, v{t0+1}, v{LP+k}")
    e(f"s_add_u32 s34, s27, {16*4096}")
    loadV(0, 27)
    loadK(1, 34)
    loadV(1, 34)
    for c in range(4):
        e(f"v_permlane32_swap_b32 v{O+c}, v{O+c+4}")
    e("s_nop 1")
    for c in range(4):
        e(f"v_add_f32 v{O+c}, v{O+c}, v{O+c+4}")
    e(f"""
    v_lshlrev_b32 v35, 2, v1
    v_add_u32 v35, {L_QACC}, v35
    """)
    for c in range(4):
        e(f"ds_add_f32 v35, v{O+c} offset:{c*256}")
    e(f"""
    s_waitcnt lgkmcnt(0)
    s_barrier
    v_and_b32 v35, 15, v1
    v_lshlrev_b32 v35, 2, v35
    v_add_u32 v35, {L_QACC}, v35
    """)
    for h in range(2):
        for ee in range(8):
            e(f"ds_read_b32 v{O+8*h+ee}, v35 offset:{((ee&3)*64+(ee>>2)*32+h*16)*4}")
    e(f"""
    v_mov_b32 v{M}, 0xff800000
    v_mov_b32 v{M+1}, 0xff800000
    v_mov_b32 v{L}, 0
    v_mov_b32 v{L+1}, 0
    s_waitcnt lgkmcnt(0)
    """)
    for h in range(2):
        for p in range(4):
            e(f"v_cvt_pk_bf16_f32 v{Q+4*h+p}, v{O+8*h+2*p}, v{O+8*h+2*p+1}")
    for i in range(16):
        e(f"v_mov_b32 v{O+i}, 0")
    stamp()
    e(f"""
    s_cmp_lg_u32 s26, 0
    s_cbranch_scc1 K_noflag
    s_mov_b32 s39, 0
    v_mov_b32 v40, 0
    """)
    e.label("K_flagpoll")
    e(f"""
    buffer_load_dword v41, v40, s[4:7], 0 offen sc0 sc1
    s_waitcnt vmcnt(0)
    v_readfirstlane_b32 s33, v41
    s_add_u32 s39, s39, 1
    s_nop 3
    s_cmp_lg_u32 s33, 0
    s_cbranch_scc1 K_noflag
    s_cmp_lt_u32 s39, {POLL_MAX}
    s_cbranch_scc1 K_flagpoll
    """)
    e.label("K_noflag")

    def scores(buf):
        kb = KB[buf]
        for j in range(4):
            for u in range(U):
                for h in range(2):
                    if j == 0:
                        e(f"v_dot2_f32_bf16 v{S+2*u+h}, v{kb+4*u}, v{Q+4*h}, 0")
                    else:
                        e(f"v_dot2c_f32_bf16 v{S+2*u+h}, v{kb+4*u+j}, v{Q+4*h+j}")

    def softmax_part():
        for c in DPP_ROW:
            for k in range(2 * U):
                e(f"v_add_f32_dpp v{S+k}, v{S+k}, v{S+k} {c} row_mask:0xf bank_mask:0xf")
        for u in range(U):
            e(f"v_cvt_pk_bf16_f32 v{T+u}, v{S+2*u}, v{S+2*u+1}")
        for u in range(U):
            e(f"v_lshlrev_b32 v{S+2*u}, 16, v{T+u}")
            e(f"v_and_b32 v{S+2*u+1}, 0xffff0000, v{T+u}")
        for k in range(2 * U):
            e(f"v_mul_f32 v{S+k}, s29, v{S+k}")
        for u in range(U):
            e(f"v_cvt_pk_bf16_f32 v{T+u}, v{S+2*u}, v{S+2*u+1}")
        for u in range(U):
            e(f"v_lshlrev_b32 v{S+2*u}, 16, v{T+u}")
            e(f"v_and_b32 v{S+2*u+1}, 0xffff0000, v{T+u}")
        for h in range(2):
            e(f"v_max3_f32 v{MX+h}, v{M+h}, v{S+h}, v{S+2+h}")
        for h in range(2):
            e(f"v_max3_f32 v{MX+h}, v{MX+h}, v{S+4+h}, v{S+6+h}")
        for h in range(2):
            e(f"v_sub_f32 v{AL+h}, v{M+h}, v{MX+h}")
        for k in range(2 * U):
            e(f"v_sub_f32 v{S+k}, v{S+k}, v{MX+(k&1)}")
        for h in range(2):
            e(f"v_mul_f32 v{AL+h}, s30, v{AL+h}")
        for k in range(2 * U):
            e(f"v_mul_f32 v{S+k}, s30, v{S+k}")
        for h in range(2):
            e(f"v_exp_f32 v{AL+h}, v{AL+h}")
        for k in range(2 * U):
            e(f"v_exp_f32 v{S+k}, v{S+k}")
        for h in range(2):
            e(f"v_mov_b32 v{M+h}, v{MX+h}")
        for h in range(2):
            e(f"v_mul_f32 v{L+h}, v{L+h}, v{AL+h}")
        for h in range(2):
            for i in range(8):
                e(f"v_mul_f32 v{O+8*h+i}, v{O+8*h+i}, v{AL+h}")
        for u in range(U):
            for h in range(2):
                e(f"v_add_f32 v{L+h}, v{L+h}, v{S+2*u+h}")

    def pv(buf):
        vb = VB[buf]
        for u in range(U):
            t = T + 8 * (u & 1)
            for j in range(4):
                e(f"v_lshlrev_b32 v{t+2*j}, 16, v{vb+4*u+j}")
                e(f"v_and_b32 v{t+2*j+1}, 0xffff0000, v{vb+4*u+j}")
            for h in range(2):
                for i in range(8):
                    e(f"v_fmac_f32 v{O+8*h+i}, v{S+2*u+h}, v{t+i}")

    e("s_mov_b32 s31, 0")
    e.label("K_loop")
    for buf in range(2):
        e(f"""
        s_add_u32 s34, s34, {16*4096}
        s_cmp_ge_u32 s31, {NBW//2-1}
        s_cselect_b32 s35, 0x7fff0000, s34
        s_waitcnt vmcnt(12)
        """)
        scores(buf)
        loadK(buf, 35)
        softmax_part()
        e("s_waitcnt vmcnt(12)")
        pv(buf)
        loadV(buf, 35)
    e(f"""
    s_add_u32 s31, s31, 1
    s_cmp_lt_u32 s31, {NBW//2}
    s_cbranch_scc1 K_loop
    """)
    stamp()

    e(f"""
    v_lshrrev_b32 v40, 4, v0
    v_and_b32 v41, 15, v1
    v_lshlrev_b32 v42, 10, v40
    v_lshl_add_u32 v42, v41, 5, v42
    v_add_u32 v42, {L_CMB}, v42
    ds_write_b128 v42, v[{O}:{O+3}]
    ds_write_b128 v42, v[{O+4}:{O+7}] offset:16
    ds_write_b128 v42, v[{O+8}:{O+11}] offset:512
    ds_write_b128 v42, v[{O+12}:{O+15}] offset:528
    v_lshlrev_b32 v43, 2, v40
    v_add_u32 v43, {L_MB}, v43
    ds_write_b32 v43, v{M}
    ds_write_b32 v43, v{M+1} offset:256
    ds_write_b32 v43, v{L} offset:512
    ds_write_b32 v43, v{L+1} offset:768
    s_waitcnt vmcnt(0) lgkmcnt(0)
    s_barrier
    s_cmp_ge_u32 s26, 9
    s_cbranch_scc1 K_end
    """)
    stamp()
    e(f"""
    v_lshlrev_b32 v5, 1, v0
    v_lshlrev_b32 v6, 2, v0
    buffer_load_ushort v2, v5, s[68:71], 0 offen
    buffer_load_ushort v3, v5, s[92:95], 0 offen
    s_mul_i32 s32, s28, 36
    s_lshl_b32 s33, s26, 2
    s_add_u32 s32, s32, s33
    v_mov_b32 v7, 0
    buffer_load_dword v4, v7, s[88:91], s32 offen
    s_cmp_ge_u32 s26, 4
    s_cbranch_scc1 K_nocomb
    s_lshr_b32 s31, s26, 1
    s_and_b32 s32, s26, 1
    s_lshl_b32 s33, s31, 8
    v_lshlrev_b32 v43, 2, v1
    v_add_u32 v43, s33, v43
    v_add_u32 v43, {L_MB}, v43
    ds_read_b32 v44, v43
    ds_read_b32 v45, v43 offset:512
    s_lshl_b32 s33, s31, 9
    s_lshl_b32 s34, s32, 8
    s_add_u32 s33, s33, s34
    s_add_u32 s33, s33, {L_CMB}
    v_lshlrev_b32 v46, 2, v1
    v_add_u32 v46, s33, v46
    """)
    for g in range(64):
        e(f"ds_read_b32 v{64+g}, v46 offset:{g*1024}")
    e("s_waitcnt lgkmcnt(0)")
    e("v_mov_b32 v47, v44")
    wave_reduce_to_sgpr(e, "v_max_f32", 47, 36)
    e(f"""
    v_subrev_f32 v47, s36, v44
    v_mul_f32 v47, s30, v47
    v_exp_f32 v47, v47
    s_nop 0
    v_mul_f32 v48, v47, v45
    """)
    wave_reduce_to_sgpr(e, "v_add_f32", 48, 37)
    e("v_mov_b32 v49, 0")
    for g in range(64):
        e(f"v_readlane_b32 s{40+(g&7)}, v47, {g}")
        if (g & 7) == 7:
            e("s_nop 1")
            for k in range(8):
                e(f"v_fmac_f32 v49, s{40+k}, v{64+g-7+k}")
    e(f"""
    s_lshl_b32 s33, s24, 1
    s_add_u32 s33, s33, s31
    s_lshl_b32 s34, s33, 13
    s_lshl_b32 s35, s32, 12
    s_add_u32 s34, s34, s35
    s_lshl_b32 s35, s25, 6
    s_add_u32 s34, s34, s35
    s_add_u32 s34, s34, {WS_O}
    v_lshrrev_b32 v46, 4, v1
    v_lshlrev_b32 v46, 10, v46
    v_and_b32 v50, 15, v1
    v_lshl_add_u32 v46, v50, 2, v46
    buffer_store_dword v49, v46, s[20:23], s34 offen sc0 sc1
    s_lshl_b32 s34, s33, 4
    s_add_u32 s34, s34, s25
    s_lshl_b32 s34, s34, 3
    s_add_u32 s34, s34, {WS_ML}
    v_mov_b32 v50, s36
    v_mov_b32 v51, s37
    s_mov_b64 exec, 1
    s_cmp_lg_u32 s32, 0
    s_cbranch_scc1 K_noml
    buffer_store_dwordx2 v[50:51], v7, s[20:23], s34 offen sc0 sc1
    """)
    e.label("K_noml")
    e(f"""
    s_waitcnt vmcnt(0)
    v_mov_b32 v50, 1
    s_lshl_b32 s34, s24, 8
    s_add_u32 s34, s34, {WS_C1}
    buffer_atomic_add v50, v7, s[20:23], s34 offen
    s_mov_b64 exec, -1
    """)
    e.label("K_nocomb")
    for r in range(16):
        e(f"v_mov_b32 v{64+r}, 0")
    for r in range(16):
        e(f"ds_read_u16_d16_hi v{64+r}, v5 offset:{L_WO+r*1152}")
    e(f"""
    s_lshl_b32 s34, s24, 8
    s_add_u32 s34, s34, {WS_C1}
    s_mov_b32 s39, 0
    """)
    e.label("K_poll1")
    e(f"""
    buffer_load_dword v41, v7, s[20:23], s34 offen sc0 sc1
    s_waitcnt vmcnt(0)
    v_readfirstlane_b32 s33, v41
    s_add_u32 s39, s39, 1
    s_nop 3
    s_cmp_ge_u32 s33, 64
    s_cbranch_scc1 K_poll1d
    s_cmp_lt_u32 s39, {POLL_MAX}
    s_cbranch_scc1 K_poll1
    """)
    e.label("K_poll1d")
    stamp()
    e(f"""
    s_lshl_b32 s33, s24, 1
    s_lshr_b32 s34, s25, 3
    s_add_u32 s33, s33, s34
    s_lshl_b32 s34, s33, 7
    s_add_u32 s34, s34, {WS_ML}
    v_lshrrev_b32 v40, 2, v1
    v_lshlrev_b32 v40, 3, v40
    buffer_load_dwordx2 v[44:45], v40, s[20:23], s34 offen sc0 sc1
    s_lshl_b32 s33, s33, 3
    s_and_b32 s34, s25, 7
    s_add_u32 s33, s33, s34
    s_lshl_b32 s33, s33, 10
    s_add_u32 s33, s33, {WS_O}
    buffer_load_dwordx4 v[48:51], v{VO}, s[20:23], s33 offen sc0 sc1
    s_waitcnt vmcnt(1)
    v_mov_b32 v47, v44
    """)
    wave_reduce_to_sgpr(e, "v_max_f32", 47, 36)
    e(f"""
    v_subrev_f32 v47, s36, v44
    v_mul_f32 v47, s30, v47
    v_exp_f32 v47, v47
    s_nop 0
    v_mul_f32 v52, v47, v45
    v_mul_f32 v52, 0.25, v52
    """)
    wave_reduce_to_sgpr(e, "v_add_f32", 52, 37)
    e("s_waitcnt vmcnt(0)")
    for c in range(4):
        e(f"v_mul_f32 v{48+c}, v{48+c}, v47")
    for d in ["row_ror:4", "row_ror:8"]:
        e("s_nop 1")
        for c in range(4):
            e(f"v_add_f32_dpp v{48+c}, v{48+c}, v{48+c} {d} row_mask:0xf bank_mask:0xf")
    for sw in ["v_permlane16_swap_b32", "v_permlane32_swap_b32"]:
        for c in range(4):
            e(f"v_mov_b32 v{52+c}, v{48+c}")
        e("s_nop 1")
        for c in range(4):
            e(f"{sw} v{48+c}, v{52+c}")
        e("s_nop 1")
        for c in range(4):
            e(f"v_add_f32 v{48+c}, v{48+c}, v{52+c}")
    e("v_mov_b32 v56, s37")
    for c in range(4):
        div_precise(e, 52 + c, 48 + c, 56, 57, 58)
        rbf(e, 52 + c, 52 + c)
    e("s_nop 1")
    for ln_ in range(4):
        for c in range(4):
            e(f"v_readlane_b32 s{40+4*ln_+c}, v{52+c}, {ln_}")
    e(f"""
    s_waitcnt lgkmcnt(0)
    v_mul_f32 v40, s40, v64
    """)
    for r in range(1, 16):
        e(f"v_fmac_f32 v40, s{40+r}, v{64+r}")
    e(f"""
    s_and_b32 s33, s2, {NREP1-1}
    s_mul_i32 s33, s33, 2304
    s_add_u32 s33, s33, {WS_ACC1}
    buffer_atomic_add_f32 v40, v6, s[20:23], s33 offen
    """)
    e(f"""
    v_mul_u32_u24 v41, 36, v1
    s_lshl_b32 s33, s26, 2
    s_add_u32 s33, s33, {L_W1}
    v_add_u32 v41, s33, v41
    """)
    for i in range(9):
        e(f"ds_read_b32 v{64+i}, v41 offset:{i*64*36}")
    for r in range(18):
        e(f"v_mov_b32 v{80+r}, 0")
    for r in range(18):
        e(f"ds_read_u16_d16_hi v{80+r}, v5 offset:{L_W2+r*1152}")
    e(f"""
    s_waitcnt vmcnt(0)
    s_barrier
    s_cmp_lg_u32 s26, 0
    s_cbranch_scc1 K_nocnt2
    s_and_b32 s34, s2, 15
    s_lshl_b32 s34, s34, 8
    s_add_u32 s34, s34, {WS_C2}
    v_mov_b32 v50, 1
    s_mov_b64 exec, 1
    buffer_atomic_add v50, v7, s[20:23], s34 offen
    s_mov_b64 exec, -1
    """)
    e.label("K_nocnt2")
    stamp()
    e(f"""
    v_and_b32 v42, 15, v1
    v_lshlrev_b32 v42, 8, v42
    s_mov_b32 s34, {WS_C2}
    s_mov_b32 s39, 0
    """)
    e.label("K_poll2")
    e(f"""
    buffer_load_dword v41, v42, s[20:23], s34 offen sc0 sc1
    s_waitcnt vmcnt(0)
    v_cmp_le_u32 vcc, 16, v41
    s_add_u32 s39, s39, 1
    s_nop 3
    s_cmp_eq_u64 vcc, exec
    s_cbranch_scc1 K_poll2d
    s_cmp_lt_u32 s39, {POLL_MAX}
    s_cbranch_scc1 K_poll2
    """)
    e.label("K_poll2d")
    stamp()
    e(f"s_mov_b32 s33, {WS_ACC1}")
    for r in range(NREP1):
        e(f"buffer_load_dword v{40+r}, v6, s[20:23], s33 offen sc0 sc1")
        if r < NREP1 - 1:
            e("s_add_u32 s33, s33, 2304")
    e("s_waitcnt vmcnt(0)")
    n = NREP1
    while n > 1:
        hh = n // 2
        for r in range(hh):
            e(f"v_add_f32 v{40+r}, v{40+r}, v{40+r+hh}")
        n = hh
    rbf(e, 40, 40)
    e("v_lshlrev_b32 v2, 16, v2")
    e("v_add_f32 v2, v2, v40")
    rbf(e, 2, 2)
    e(f"""
    ds_write_b32 v6, v2 offset:{L_H}
    s_waitcnt lgkmcnt(0)
    s_barrier
    v_lshlrev_b32 v41, 2, v1
    """)
    XH = 14
    for i in range(9):
        e(f"ds_read_b32 v{XH+i}, v41 offset:{L_H+i*256}")
    e("s_waitcnt lgkmcnt(0)")
    TT = 23
    e(f"v_add_f32 v{TT}, v{XH}, v{XH+1}")
    for i in range(2, 9):
        e(f"v_add_f32 v{TT}, v{TT}, v{XH+i}")
    wave_reduce_to_sgpr(e, "v_add_f32", TT, 36)
    ln_mean(e, TT, 36)
    e(f"v_sub_f32 v{TT+1}, v{XH}, v{TT}")
    e(f"v_mul_f32 v{TT+2}, v{TT+1}, v{TT+1}")
    for i in range(1, 9):
        e(f"v_sub_f32 v{TT+1}, v{XH+i}, v{TT}")
        e(f"v_fmac_f32 v{TT+2}, v{TT+1}, v{TT+1}")
    wave_reduce_to_sgpr(e, "v_add_f32", TT + 2, 36)
    ln_finish_stats(e, TT, 36)
    for i in range(9):
        ln_apply(e, XH + i, XH + i, TT)
    e("v_mov_b32 v40, 0")
    e("v_mov_b32 v41, 0")
    for i in range(9):
        e(f"v_lshlrev_b32 v42, 16, v{64+i}")
        e(f"v_and_b32 v43, 0xffff0000, v{64+i}")
        e(f"v_fmac_f32 v40, v{XH+i}, v42")
        e(f"v_fmac_f32 v41, v{XH+i}, v43")
    wave_reduce_to_sgpr(e, "v_add_f32", 40, 36)
    wave_reduce_to_sgpr(e, "v_add_f32", 41, 37)
    e(f"""
    v_mov_b32 v40, s36
    v_mov_b32 v41, s37
    v_lshlrev_b32 v42, 16, v4
    v_and_b32 v43, 0xffff0000, v4
    """)
    for c in range(2):
        rbf(e, 40 + c, 40 + c)
        e(f"v_add_f32 v{40+c}, v{40+c}, v{42+c}")
        rbf(e, 40 + c, 40 + c)
        e(f"v_max_f32 v{40+c}, 0, v{40+c}")
        e(f"v_mul_f32 v{40+c}, v{40+c}, v{40+c}")
        rbf(e, 40 + c, 40 + c)
    e(f"""
    s_lshl_b32 s33, s26, 3
    s_add_u32 s33, s33, {L_H1}
    v_mov_b32 v42, s33
    s_mov_b64 exec, 1
    ds_write_b64 v42, v[40:41]
    s_mov_b64 exec, -1
    s_waitcnt lgkmcnt(0)
    s_barrier
    ds_read_b128 v[40:43], v7 offset:{L_H1}
    ds_read_b128 v[44:47], v7 offset:{L_H1+16}
    ds_read_b128 v[48:51], v7 offset:{L_H1+32}
    ds_read_b128 v[52:55], v7 offset:{L_H1+48}
    ds_read_b64 v[56:57], v7 offset:{L_H1+64}
    s_waitcnt lgkmcnt(0)
    v_mul_f32 v58, v40, v80
    """)
    for r in range(1, 18):
        e(f"v_fmac_f32 v58, v{40+r}, v{80+r}")
    e(f"""
    s_and_b32 s33, s2, {NREP2-1}
    s_mul_i32 s33, s33, 2304
    s_add_u32 s33, s33, {WS_ACC2}
    buffer_atomic_add_f32 v58, v6, s[20:23], s33 offen
    s_waitcnt vmcnt(0)
    s_barrier
    s_cmp_lg_u32 s26, 0
    s_cbranch_scc1 K_nocnt3
    s_and_b32 s34, s2, 15
    s_lshl_b32 s34, s34, 8
    s_add_u32 s34, s34, {WS_C3}
    v_mov_b32 v50, 1
    s_mov_b64 exec, 1
    buffer_atomic_add v50, v7, s[20:23], s34 offen
    s_mov_b64 exec, -1
    """)
    e.label("K_nocnt3")
    stamp()
    e(f"""
    s_cmp_lg_u32 s2, 0
    s_cbranch_scc1 K_fin
    v_and_b32 v42, 15, v1
    v_lshlrev_b32 v42, 8, v42
    s_mov_b32 s34, {WS_C3}
    s_mov_b32 s39, 0
    """)
    e.label("K_poll3")
    e(f"""
    buffer_load_dword v41, v42, s[20:23], s34 offen sc0 sc1
    s_waitcnt vmcnt(0)
    v_cmp_le_u32 vcc, 16, v41
    s_add_u32 s39, s39, 1
    s_nop 3
    s_cmp_eq_u64 vcc, exec
    s_cbranch_scc1 K_poll3d
    s_cmp_lt_u32 s39, {POLL_MAX}
    s_cbranch_scc1 K_poll3
    """)
    e.label("K_poll3d")
    e(f"s_mov_b32 s33, {WS_ACC2}")
    for r in range(NREP2):
        e(f"buffer_load_dword v{40+r}, v6, s[20:23], s33 offen sc0 sc1")
        if r < NREP2 - 1:
            e("s_add_u32 s33, s33, 2304")
    e("s_waitcnt vmcnt(0)")
    n = NREP2
    while n > 1:
        hh = n // 2
        for r in range(hh):
            e(f"v_add_f32 v{40+r}, v{40+r}, v{40+r+hh}")
        n = hh
    rbf(e, 40, 40)
    e("v_lshlrev_b32 v3, 16, v3")
    e("v_add_f32 v40, v40, v3")
    rbf(e, 40, 40)
    e("v_add_f32 v40, v40, v2")
    e("v_cvt_pk_bf16_f32 v40, v40, v40")
    e("buffer_store_short v40, v5, s[96:99], 0 offen")
    stamp()
    e.label("K_fin")
    if DIAG:
        e(f"""
        s_cmp_lg_u32 s26, 0
        s_cbranch_scc1 K_end
        s_lshl_b32 s33, s2, 8
        s_add_u32 s33, s33, {WS_DIAG}
        v_lshlrev_b32 v41, 2, v1
        buffer_store_dword v39, v41, s[20:23], s33 offen
        """)
    e.label("K_end")
    e("s_endpgm")
    return name


def main():
    ref = open(f"cdna_kernels/{NAME}.s.ref").read().split("\n")
    head = [l for l in ref if l.startswith(";") and "@launch" not in l and "Override launch" not in l and "grid=ceil" not in l]
    out = list(head)
    out.append(f"; @launch kernel=fused_kernel grid=({NWG},1,1) block=(1024,1,1) lds={LDS_BYTES}")
    out.append('.amdgcn_target "amdgcn-amd-amdhsa--gfx950"')
    out.append(".text")
    e = E()
    gen(e)
    s = "\n".join(out) + "\n" + e.text()
    s += '.section .rodata,"a"\n.p2align 6\n'
    s += kernel_desc("fused_kernel", 128, 102)
    open(OUT, "w").write(s)
    print("wrote", OUT, len(s))


if __name__ == "__main__":
    main()
```

```python
import sys, re, os
sys.path.insert(0, os.path.dirname(os.path.abspath(__file__)))
from gen import (E, srd, rbf, DPP_ROW, row_allreduce, wave_reduce_to_sgpr, div_precise, kernel_header,
                 kernel_desc, ln_wave, ln_mean, ln_finish_stats, ln_apply, NAME, LOG2E, SCALE)

OUT = os.environ.get("OUT", f"cdna_kernels/{NAME}.s")
DIAG = int(os.environ.get("DIAG", "0"))
NREP1 = int(os.environ.get("NREP1", "8"))
NREP2 = int(os.environ.get("NREP2", "8"))
PB = int(os.environ.get("PB", "32"))
NSUB = int(os.environ.get("NSUB", "4"))
SLEEP = int(os.environ.get("SLEEP", "1"))
NT = " nt"
SLOC = 256 - PB
LPB = PB.bit_length() - 1
PTOT = 16 * PB

WS_Q = 0
WS_ML = 8192
WS_CNT = 16384
WS_CP = WS_CNT
WS_C2 = WS_CP + 16 * NSUB * 256
WS_C3 = WS_C2 + 4096
WS_ACC1 = WS_C3 + 4096
WS_ACC2 = WS_ACC1 + NREP1 * 2304
ZERO_BYTES = (WS_ACC2 + NREP2 * 2304 - WS_CNT + 1023) // 1024 * 1024
WS_O = 262144
assert WS_CNT + ZERO_BYTES <= WS_O
WS_DIAG = 1 << 20
WS_SIZE = 0x40000000
OOB = 0x7fff0000

L_WO = 0
L_W2 = 18432
L_W1 = L_W2 + 21504
L_Q = L_W1 + 20736
L_CNT = L_Q + 512
L_O16 = L_CNT + 64
L_H = 62848
L_H1 = L_H + 2304
L_CMB = 65536
L_MB = L_CMB + 65536
LDS_BYTES = L_MB + 1024

NWG = 256
U = 4
POLL_MAX = 0x200000


def gen(e):
    name = "fused_kernel"
    kernel_header(e, name)
    Q = 2
    M = 10
    L = 12
    O = 14
    S = 30
    VO = 38
    T = 40
    MX = 56
    AL = 58
    VG = [60, 61]
    KB = [64, 96]
    VB = [80, 112]
    ndiag = [0]

    def stamp():
        if not DIAG:
            return
        k = ndiag[0]
        ndiag[0] += 1
        e(f"""
        s_memrealtime s[8:9]
        s_waitcnt lgkmcnt(0)
        v_writelane_b32 v39, s8, {k}
        """)

    def sleep():
        if SLEEP:
            e(f"s_sleep {SLEEP}")

    e(f"""
    s_cmp_ge_u32 s2, {NWG}
    s_cbranch_scc1 K_end
    s_load_dwordx4 s[40:43], s[0:1], 0
    s_load_dwordx4 s[44:47], s[0:1], 16
    s_load_dwordx2 s[48:49], s[0:1], 32
    s_load_dwordx4 s[52:55], s[0:1], 48
    s_load_dwordx4 s[56:59], s[0:1], 64
    s_load_dwordx4 s[60:63], s[0:1], 80
    s_load_dwordx2 s[64:65], s[0:1], 96
    v_and_b32 v1, 63, v0
    v_lshrrev_b32 v39, 6, v0
    v_lshlrev_b32 v{VO}, 4, v1
    v_readfirstlane_b32 s26, v39
    s_mov_b32 s29, {SCALE}
    s_mov_b32 s30, {LOG2E}
    s_lshr_b32 s24, s2, 4
    s_and_b32 s25, s2, 15
    s_and_b32 s3, s2, 7
    s_lshr_b32 s4, s2, 3
    s_lshl_b32 s28, s3, 5
    s_add_u32 s28, s28, s4
    s_lshl_b32 s27, s2, 20
    s_lshl_b32 s10, s24, 24
    v_mov_b32 v62, {L_CNT}
    s_waitcnt lgkmcnt(0)
    """)
    if DIAG:
        e("v_mov_b32 v39, 0")
    stamp()
    srd(e, 12, 42, 0x10000000)
    srd(e, 16, 44, 0x10000000)
    srd(e, 20, 64, WS_SIZE)
    srd(e, 68, 40, 1152)
    srd(e, 72, 46, 576 * 8192)
    srd(e, 76, 48, 4096 * 1152)
    srd(e, 80, 52, 576 * 9216)
    srd(e, 84, 56, 4608 * 1152)
    srd(e, 88, 54, 9216)
    srd(e, 92, 58, 1152)
    srd(e, 96, 60, 1152)
    srd(e, 4, 62, 256)
    e(f"""
    s_and_b32 s11, s26, {NSUB-1}
    s_mul_i32 s3, s24, {NSUB}
    s_add_u32 s11, s11, s3
    s_lshl_b32 s11, s11, 8
    s_add_u32 s11, s11, {WS_CP}
    s_cmp_eq_u32 s26, 0
    s_cbranch_scc1 K_helper
    """)

    e(f"""
    s_cmp_lg_u32 s2, 0
    s_cbranch_scc1 K_noinit
    s_cmp_lt_u32 s26, 14
    s_cbranch_scc1 K_noinit
    s_cmp_eq_u32 s26, 14
    s_cbranch_scc1 K_init2
    v_mov_b32 v40, -1
    v_mov_b32 v41, -1
    v_mov_b32 v42, -1
    v_mov_b32 v43, -1
    s_mov_b32 s32, {WS_Q}
    """)
    for i in range(8):
        if i and i % 4 == 0:
            e("s_add_u32 s32, s32, 4096")
        e(f"buffer_store_dwordx4 v[40:43], v{VO}, s[20:23], s32 offen offset:{(i%4)*1024} sc0 sc1")
    e(f"""
    s_waitcnt vmcnt(0)
    v_mov_b32 v41, 1
    s_mov_b64 exec, 1
    buffer_store_dword v41, off, s[4:7], 0 sc0 sc1
    s_mov_b64 exec, -1
    s_branch K_noinit
    """)
    e.label("K_init2")
    e(f"""
    v_mov_b32 v40, 0
    v_mov_b32 v41, 0
    v_mov_b32 v42, 0
    v_mov_b32 v43, 0
    s_mov_b32 s32, {WS_CNT}
    """)
    for i in range(ZERO_BYTES // 1024):
        if i and i % 4 == 0:
            e("s_add_u32 s32, s32, 4096")
        e(f"buffer_store_dwordx4 v[40:43], v{VO}, s[20:23], s32 offen offset:{(i%4)*1024} sc0 sc1")
    e(f"""
    s_waitcnt vmcnt(0)
    v_mov_b32 v41, 1
    s_mov_b64 exec, 1
    buffer_store_dword v41, off, s[4:7], 0 offset:4 sc0 sc1
    s_mov_b64 exec, -1
    """)
    e.label("K_noinit")

    def loadK(buf, soff):
        for u in range(U):
            e(f"buffer_load_dwordx4 v[{KB[buf]+4*u}:{KB[buf]+4*u+3}], v{VO}, s[12:15], s{soff} offen offset:{u*1024}{NT}")

    def loadV(buf, soff):
        for u in range(U):
            e(f"buffer_load_dwordx4 v[{VB[buf]+4*u}:{VB[buf]+4*u+3}], v{VO}, s[16:19], s{soff} offen offset:{u*1024}{NT}")

    def atom(buf, soff):
        e(f"""
        v_mov_b32 v{VG[buf]}, 1
        s_mov_b64 exec, 1
        buffer_atomic_add v{VG[buf]}, off, s[20:23], s{soff} sc0
        s_mov_b64 exec, -1
        """)

    e(f"""
    s_sub_u32 s31, s26, 1
    s_lshl_b32 s32, s24, 4
    s_add_u32 s32, s32, s25
    s_mul_i32 s32, s32, {16*1152}
    s_lshl_b32 s33, s31, 10
    s_add_u32 s32, s32, s33
    s_add_u32 s34, s33, {L_WO}
    s_mov_b32 m0, s34
    s_nop 0
    buffer_load_dwordx4 v{VO}, s[76:79], s32 offen lds
    s_cmp_ge_u32 s31, 3
    s_cbranch_scc1 K_wo_done
    s_add_u32 s32, s32, {15*1024}
    s_add_u32 s34, s34, {15*1024}
    s_mov_b32 m0, s34
    s_nop 0
    buffer_load_dwordx4 v{VO}, s[76:79], s32 offen lds
    """)
    e.label("K_wo_done")
    e(f"""
    s_mul_i32 s32, s28, 20736
    s_add_u32 s32, s32, s33
    s_add_u32 s34, s33, {L_W2}
    s_mov_b32 m0, s34
    s_nop 0
    buffer_load_dwordx4 v{VO}, s[84:87], s32 offen lds
    s_cmp_ge_u32 s31, 6
    s_cbranch_scc1 K_w2_done
    s_add_u32 s32, s32, {15*1024}
    s_add_u32 s34, s34, {15*1024}
    s_mov_b32 m0, s34
    s_nop 0
    buffer_load_dwordx4 v{VO}, s[84:87], s32 offen lds
    """)
    e.label("K_w2_done")
    e(f"""
    s_mul_i32 s32, s28, 36
    s_lshl_b32 s33, s31, 8
    s_add_u32 s34, s33, {L_W1}
    s_movk_i32 s35, 9216
    v_subrev_u32 v30, 64, v0
    """)
    for k in range(6):
        if k == 5:
            e("s_cmp_ge_u32 s31, 6")
            e("s_cbranch_scc1 K_w1_done")
        e(f"""
        v_add_u32 v31, {k*960}, v30
        v_mul_u32_u24 v32, 7282, v31
        v_lshrrev_b32 v32, 16, v32
        v_mul_u32_u24 v33, 9, v32
        v_sub_u32 v33, v31, v33
        v_mul_u32_u24 v32, s35, v32
        v_lshl_add_u32 v32, v33, 2, v32
        s_mov_b32 m0, s34
        s_add_u32 s34, s34, {15*256}
        buffer_load_dword v32, s[80:83], s32 offen lds
        """)
    e.label("K_w1_done")
    e(f"""
    s_lshl_b32 s32, s31, 12
    s_add_u32 s32, s32, s27
    s_add_u32 s33, s32, {15*4096}
    s_add_u32 s34, s32, {30*4096}
    s_add_u32 s35, s32, {45*4096}
    s_mov_b32 s3, {OOB}
    """)
    atom(0, 3)
    loadK(0, 32)
    loadV(0, 32)
    atom(1, 3)
    loadK(1, 33)
    loadV(1, 33)
    e("s_barrier")
    e("s_branch K_common")

    e.label("K_helper")
    X = 14

    def WR(i):
        return 64 + 8 * i if i < 8 else 46
    e("v_lshlrev_b32 v40, 1, v1")
    for i in range(9):
        e(f"buffer_load_ushort v{X+i}, v40, s[68:71], 0 offen offset:{i*128}")
    e(f"""
    v_lshlrev_b32 v40, 13, v1
    s_lshl_b32 s32, s2, 5
    """)
    for i in range(9):
        e(f"buffer_load_dwordx4 v[{WR(i)}:{WR(i)+3}], v40, s[72:75], s32 offen")
        e(f"buffer_load_dwordx4 v[{WR(i)+4}:{WR(i)+7}], v40, s[72:75], s32 offen offset:16")
        if i < 8:
            e("s_add_u32 s32, s32, 0x80000")
    e(f"""
    v_mov_b32 v40, -1
    v_mov_b32 v41, -1
    v_lshrrev_b32 v42, 4, v1
    v_lshlrev_b32 v42, 10, v42
    v_and_b32 v43, 15, v1
    v_lshl_add_u32 v42, v43, 2, v42
    s_lshl_b32 s33, s24, 14
    s_lshl_b32 s34, s25, 6
    s_add_u32 s33, s33, s34
    s_add_u32 s33, s33, {WS_O}
    buffer_store_dword v40, v42, s[20:23], s33 offen sc0 sc1
    s_add_u32 s33, s33, 4096
    buffer_store_dword v40, v42, s[20:23], s33 offen sc0 sc1
    s_add_u32 s33, s33, 4096
    buffer_store_dword v40, v42, s[20:23], s33 offen sc0 sc1
    s_add_u32 s33, s33, 4096
    buffer_store_dword v40, v42, s[20:23], s33 offen sc0 sc1
    s_lshl_b32 s33, s24, 8
    s_lshl_b32 s34, s25, 3
    s_add_u32 s33, s33, s34
    s_add_u32 s33, s33, {WS_ML}
    s_mov_b64 exec, 1
    buffer_store_dwordx2 v[40:41], off, s[20:23], s33 sc0 sc1
    buffer_store_dwordx2 v[40:41], off, s[20:23], s33 offset:128 sc0 sc1
    s_mov_b64 exec, -1
    s_waitcnt vmcnt(24)
    """)
    ln_wave(e, X=X, LN=X, T=23, S=36)
    A = 30
    ACC = list(range(2, 14)) + [30, 31, 32, 33]
    for c in range(16):
        e(f"v_mov_b32 v{ACC[c]}, 0")
    e("s_waitcnt vmcnt(0)")
    stamp()
    e("buffer_load_dwordx2 v[44:45], off, s[4:7], 0 sc0 sc1")
    for i in range(9):
        for j in range(8):
            w = WR(i) + j
            e(f"v_lshlrev_b32 v40, 16, v{w}")
            e(f"v_and_b32 v41, 0xffff0000, v{w}")
            e(f"v_fmac_f32 v{ACC[2*j]}, v{X+i}, v40")
            e(f"v_fmac_f32 v{ACC[2*j+1]}, v{X+i}, v41")
    e("s_nop 1")
    for c in range(8):
        e(f"v_permlane32_swap_b32 v{ACC[c]}, v{ACC[c+8]}")
    e("s_nop 1")
    for c in range(8):
        e(f"v_add_f32 v{ACC[c]}, v{ACC[c]}, v{ACC[c+8]}")
    e("s_nop 1")
    for c in range(4):
        e(f"v_permlane16_swap_b32 v{ACC[c]}, v{ACC[c+4]}")
    e("s_nop 1")
    for c in range(4):
        e(f"v_add_f32 v{ACC[c]}, v{ACC[c]}, v{ACC[c+4]}")
    for d in DPP_ROW:
        e("s_nop 1")
        for c in range(4):
            e(f"v_add_f32_dpp v{ACC[c]}, v{ACC[c]}, v{ACC[c]} {d} row_mask:0xf bank_mask:0xf")
    e(f"""
    v_cvt_pk_bf16_f32 v40, v{ACC[0]}, v{ACC[1]}
    v_cvt_pk_bf16_f32 v41, v{ACC[2]}, v{ACC[3]}
    v_lshrrev_b32 v42, 4, v1
    v_lshlrev_b32 v42, 3, v42
    v_and_b32 v43, 15, v1
    s_mov_b32 s39, 0
    """)
    e.label("K_flagchk")
    e(f"""
    s_waitcnt vmcnt(0)
    v_and_b32 v44, v44, v45
    s_nop 0
    v_readfirstlane_b32 s33, v44
    s_add_u32 s39, s39, 1
    s_nop 3
    s_cmp_lg_u32 s33, 0
    s_cbranch_scc1 K_flagok
    s_cmp_ge_u32 s39, {POLL_MAX}
    s_cbranch_scc1 K_flagok
    buffer_load_dwordx2 v[44:45], off, s[4:7], 0 sc0 sc1
    s_branch K_flagchk
    """)
    e.label("K_flagok")
    e(f"""
    s_lshl_b32 s32, s2, 5
    v_cmp_eq_u32 vcc, 0, v43
    s_and_saveexec_b64 s[38:39], vcc
    buffer_store_dwordx2 v[40:41], v42, s[20:23], s32 offen offset:{WS_Q} sc0 sc1
    s_mov_b64 exec, -1
    s_lshl_b32 s32, s24, 9
    v_and_b32 v42, 31, v1
    v_lshlrev_b32 v42, 4, v42
    s_mov_b32 s39, 0
    """)
    stamp()
    e.label("K_qpoll")
    e(f"""
    buffer_load_dwordx4 v[44:47], v42, s[20:23], s32 offen offset:{WS_Q} sc0 sc1
    s_waitcnt vmcnt(0)
    v_cmp_ne_u32 vcc, -1, v44
    v_cmp_ne_u32 s[34:35], -1, v45
    s_and_b64 vcc, vcc, s[34:35]
    v_cmp_ne_u32 s[34:35], -1, v46
    s_and_b64 vcc, vcc, s[34:35]
    v_cmp_ne_u32 s[34:35], -1, v47
    s_and_b64 vcc, vcc, s[34:35]
    s_add_u32 s39, s39, 1
    s_cmp_eq_u64 vcc, exec
    s_cbranch_scc1 K_qok
    s_cmp_ge_u32 s39, {POLL_MAX}
    s_cbranch_scc1 K_qok
    """)
    sleep()
    e("s_branch K_qpoll")
    e.label("K_qok")
    e(f"""
    v_add_u32 v42, {L_Q}, v42
    v_mov_b32 v43, 64
    ds_write_b128 v42, v[44:47]
    ds_write_b32 v62, v43
    s_add_u32 s32, s27, {60*4096}
    s_add_u32 s33, s27, {61*4096}
    s_add_u32 s34, s27, {62*4096}
    s_add_u32 s35, s27, {63*4096}
    s_mov_b32 s3, {OOB}
    s_waitcnt lgkmcnt(0)
    s_barrier
    """)
    atom(0, 3)
    loadK(0, 32)
    loadV(0, 32)
    atom(1, 3)
    loadK(1, 33)
    loadV(1, 33)

    e.label("K_common")
    stamp()
    e(f"""
    v_and_b32 v40, 15, v1
    v_lshlrev_b32 v40, 4, v40
    v_add_u32 v40, {L_Q}, v40
    ds_read_b128 v[{Q}:{Q+3}], v40
    ds_read_b128 v[{Q+4}:{Q+7}], v40 offset:256
    v_mov_b32 v{M}, 0xff800000
    v_mov_b32 v{M+1}, 0xff800000
    v_mov_b32 v{L}, 0
    v_mov_b32 v{L+1}, 0
    s_and_b32 s31, s26, {NSUB-1}
    """)
    for i in range(16):
        e(f"v_mov_b32 v{O+i}, 0")
    e("s_waitcnt lgkmcnt(0)")

    def scores(buf):
        kb = KB[buf]
        for j in range(4):
            for u in range(U):
                for h in range(2):
                    if j == 0:
                        e(f"v_dot2_f32_bf16 v{S+2*u+h}, v{kb+4*u}, v{Q+4*h}, 0")
                    else:
                        e(f"v_dot2c_f32_bf16 v{S+2*u+h}, v{kb+4*u+j}, v{Q+4*h+j}")

    def softmax_part():
        for c in DPP_ROW:
            for k in range(2 * U):
                e(f"v_add_f32_dpp v{S+k}, v{S+k}, v{S+k} {c} row_mask:0xf bank_mask:0xf")
        for u in range(U):
            e(f"v_cvt_pk_bf16_f32 v{T+u}, v{S+2*u}, v{S+2*u+1}")
        for u in range(U):
            e(f"v_lshlrev_b32 v{S+2*u}, 16, v{T+u}")
            e(f"v_and_b32 v{S+2*u+1}, 0xffff0000, v{T+u}")
        for k in range(2 * U):
            e(f"v_mul_f32 v{S+k}, s29, v{S+k}")
        for u in range(U):
            e(f"v_cvt_pk_bf16_f32 v{T+u}, v{S+2*u}, v{S+2*u+1}")
        for u in range(U):
            e(f"v_lshlrev_b32 v{S+2*u}, 16, v{T+u}")
            e(f"v_and_b32 v{S+2*u+1}, 0xffff0000, v{T+u}")
        for h in range(2):
            e(f"v_max3_f32 v{MX+h}, v{M+h}, v{S+h}, v{S+2+h}")
        for h in range(2):
            e(f"v_max3_f32 v{MX+h}, v{MX+h}, v{S+4+h}, v{S+6+h}")
        for h in range(2):
            e(f"v_sub_f32 v{AL+h}, v{M+h}, v{MX+h}")
        for k in range(2 * U):
            e(f"v_sub_f32 v{S+k}, v{S+k}, v{MX+(k&1)}")
        for h in range(2):
            e(f"v_mul_f32 v{AL+h}, s30, v{AL+h}")
        for k in range(2 * U):
            e(f"v_mul_f32 v{S+k}, s30, v{S+k}")
        for h in range(2):
            e(f"v_exp_f32 v{AL+h}, v{AL+h}")
        for k in range(2 * U):
            e(f"v_exp_f32 v{S+k}, v{S+k}")
        for h in range(2):
            e(f"v_mov_b32 v{M+h}, v{MX+h}")
        for h in range(2):
            e(f"v_mul_f32 v{L+h}, v{L+h}, v{AL+h}")
        for h in range(2):
            for i in range(8):
                e(f"v_mul_f32 v{O+8*h+i}, v{O+8*h+i}, v{AL+h}")
        for u in range(U):
            for h in range(2):
                e(f"v_add_f32 v{L+h}, v{L+h}, v{S+2*u+h}")

    def pv(buf):
        vb = VB[buf]
        for u in range(U):
            t = T + 8 * (u & 1)
            for j in range(4):
                e(f"v_lshlrev_b32 v{t+2*j}, 16, v{vb+4*u+j}")
                e(f"v_and_b32 v{t+2*j+1}, 0xffff0000, v{vb+4*u+j}")
            for h in range(2):
                for i in range(8):
                    e(f"v_fmac_f32 v{O+8*h+i}, v{S+2*u+h}, v{t+i}")

    e.label("K_loop")
    for buf in range(2):
        cur = 32 + buf
        nxt = 34 + buf
        e(f"""
        s_cmp_eq_u32 s{cur}, {OOB}
        s_cbranch_scc1 K_done
        v_mov_b32 v63, 1
        s_mov_b64 exec, 1
        ds_add_rtn_u32 v63, v62, v63
        s_mov_b64 exec, -1
        s_waitcnt vmcnt(13)
        v_readfirstlane_b32 s36, v{VG[buf]}
        """)
        scores(buf)
        e(f"""
        s_mul_i32 s36, s36, {NSUB}
        s_add_u32 s36, s36, s31
        s_lshr_b32 s37, s36, {LPB}
        s_lshl_b32 s37, s37, 20
        s_and_b32 s38, s36, {PB-1}
        s_add_u32 s38, s38, {SLOC}
        s_lshl_b32 s38, s38, 12
        s_add_u32 s37, s37, s38
        s_add_u32 s37, s37, s10
        s_cmp_lt_u32 s36, {PTOT}
        s_cselect_b32 s37, s37, {OOB}
        s_cmp_eq_u32 s{nxt}, -1
        s_cselect_b32 s{cur}, s37, s{nxt}
        s_waitcnt lgkmcnt(0)
        v_readfirstlane_b32 s36, v63
        s_nop 3
        s_lshl_b32 s37, s36, 12
        s_add_u32 s37, s37, s27
        s_cmp_lt_u32 s36, {SLOC}
        s_cselect_b32 s{nxt}, s37, -1
        s_cselect_b32 s3, {OOB}, s11
        """)
        atom(buf, 3)
        loadK(buf, cur)
        softmax_part()
        e("s_waitcnt vmcnt(14)")
        pv(buf)
        loadV(buf, cur)
    e("s_branch K_loop")
    e.label("K_done")
    stamp()

    e(f"""
    v_lshrrev_b32 v40, 4, v0
    v_and_b32 v41, 15, v1
    v_lshlrev_b32 v42, 10, v40
    v_lshl_add_u32 v42, v41, 5, v42
    v_add_u32 v42, {L_CMB}, v42
    ds_write_b128 v42, v[{O}:{O+3}]
    ds_write_b128 v42, v[{O+4}:{O+7}] offset:16
    ds_write_b128 v42, v[{O+8}:{O+11}] offset:512
    ds_write_b128 v42, v[{O+12}:{O+15}] offset:528
    v_lshlrev_b32 v43, 2, v40
    v_add_u32 v43, {L_MB}, v43
    ds_write_b32 v43, v{M}
    ds_write_b32 v43, v{M+1} offset:256
    ds_write_b32 v43, v{L} offset:512
    ds_write_b32 v43, v{L+1} offset:768
    s_waitcnt vmcnt(0) lgkmcnt(0)
    s_barrier
    s_cmp_ge_u32 s26, 9
    s_cbranch_scc1 K_end
    """)
    stamp()
    e(f"""
    v_lshlrev_b32 v5, 1, v0
    v_lshlrev_b32 v6, 2, v0
    v_mov_b32 v7, 0
    s_cmp_ge_u32 s26, 4
    s_cbranch_scc1 K_nocomb
    s_lshr_b32 s31, s26, 1
    s_and_b32 s32, s26, 1
    s_lshl_b32 s33, s31, 8
    v_lshlrev_b32 v43, 2, v1
    v_add_u32 v43, s33, v43
    v_add_u32 v43, {L_MB}, v43
    ds_read_b32 v44, v43
    ds_read_b32 v45, v43 offset:512
    s_lshl_b32 s33, s31, 9
    s_lshl_b32 s34, s32, 8
    s_add_u32 s33, s33, s34
    s_add_u32 s33, s33, {L_CMB}
    v_lshlrev_b32 v46, 2, v1
    v_add_u32 v46, s33, v46
    """)
    for g in range(64):
        e(f"ds_read_b32 v{64+g}, v46 offset:{g*1024}")
    e("s_waitcnt lgkmcnt(0)")
    e("v_mov_b32 v47, v44")
    wave_reduce_to_sgpr(e, "v_max_f32", 47, 36)
    e(f"""
    v_subrev_f32 v47, s36, v44
    v_mul_f32 v47, s30, v47
    v_exp_f32 v47, v47
    s_nop 0
    v_mul_f32 v48, v47, v45
    """)
    wave_reduce_to_sgpr(e, "v_add_f32", 48, 37)
    e("v_mov_b32 v49, 0")
    for g in range(64):
        e(f"v_readlane_b32 s{40+(g&7)}, v47, {g}")
        if (g & 7) == 7:
            e("s_nop 1")
            for k in range(8):
                e(f"v_fmac_f32 v49, s{40+k}, v{64+g-7+k}")
    e(f"""
    s_lshl_b32 s33, s24, 1
    s_add_u32 s33, s33, s31
    s_lshl_b32 s34, s33, 13
    s_lshl_b32 s35, s32, 12
    s_add_u32 s34, s34, s35
    s_lshl_b32 s35, s25, 6
    s_add_u32 s34, s34, s35
    s_add_u32 s34, s34, {WS_O}
    v_lshrrev_b32 v46, 4, v1
    v_lshlrev_b32 v46, 10, v46
    v_and_b32 v50, 15, v1
    v_lshl_add_u32 v46, v50, 2, v46
    buffer_store_dword v49, v46, s[20:23], s34 offen sc0 sc1
    s_cmp_lg_u32 s32, 0
    s_cbranch_scc1 K_nocomb
    s_lshl_b32 s34, s33, 4
    s_add_u32 s34, s34, s25
    s_lshl_b32 s34, s34, 3
    s_add_u32 s34, s34, {WS_ML}
    v_mov_b32 v50, s36
    v_mov_b32 v51, s37
    s_mov_b64 exec, 1
    buffer_store_dwordx2 v[50:51], v7, s[20:23], s34 offen sc0 sc1
    s_mov_b64 exec, -1
    """)
    e.label("K_nocomb")
    e(f"""
    buffer_load_ushort v2, v5, s[68:71], 0 offen
    buffer_load_ushort v3, v5, s[92:95], 0 offen
    s_mul_i32 s32, s28, 36
    s_lshl_b32 s33, s26, 2
    s_add_u32 s32, s32, s33
    buffer_load_dword v4, v7, s[88:91], s32 offen
    """)
    for r in range(16):
        e(f"v_mov_b32 v{64+r}, 0")
    for r in range(16):
        e(f"ds_read_u16_d16_hi v{64+r}, v5 offset:{L_WO+r*1152}")
    e(f"""
    s_cmp_lg_u32 s26, 4
    s_cbranch_scc1 K_noo16
    s_lshl_b32 s33, s24, 1
    s_lshr_b32 s34, s25, 3
    s_add_u32 s33, s33, s34
    s_lshl_b32 s32, s33, 7
    s_add_u32 s32, s32, {WS_ML}
    v_lshrrev_b32 v40, 2, v1
    v_lshlrev_b32 v40, 3, v40
    s_lshl_b32 s33, s33, 3
    s_and_b32 s34, s25, 7
    s_add_u32 s33, s33, s34
    s_lshl_b32 s33, s33, 10
    s_add_u32 s33, s33, {WS_O}
    s_mov_b32 s39, 0
    """)
    e.label("K_poll1")
    e(f"""
    buffer_load_dwordx2 v[44:45], v40, s[20:23], s32 offen sc0 sc1
    buffer_load_dwordx4 v[48:51], v{VO}, s[20:23], s33 offen sc0 sc1
    s_waitcnt vmcnt(0)
    v_cmp_ne_u32 vcc, -1, v44
    """)
    for r in [45, 48, 49, 50, 51]:
        e(f"v_cmp_ne_u32 s[34:35], -1, v{r}")
        e("s_and_b64 vcc, vcc, s[34:35]")
    e(f"""
    s_add_u32 s39, s39, 1
    s_cmp_eq_u64 vcc, exec
    s_cbranch_scc1 K_poll1d
    s_cmp_ge_u32 s39, {POLL_MAX}
    s_cbranch_scc1 K_poll1d
    """)
    sleep()
    e("s_branch K_poll1")
    e.label("K_poll1d")
    e("v_mov_b32 v47, v44")
    wave_reduce_to_sgpr(e, "v_max_f32", 47, 36)
    e(f"""
    v_subrev_f32 v47, s36, v44
    v_mul_f32 v47, s30, v47
    v_exp_f32 v47, v47
    s_nop 0
    v_mul_f32 v52, v47, v45
    v_mul_f32 v52, 0.25, v52
    """)
    wave_reduce_to_sgpr(e, "v_add_f32", 52, 37)
    for c in range(4):
        e(f"v_mul_f32 v{48+c}, v{48+c}, v47")
    for d in ["row_ror:4", "row_ror:8"]:
        e("s_nop 1")
        for c in range(4):
            e(f"v_add_f32_dpp v{48+c}, v{48+c}, v{48+c} {d} row_mask:0xf bank_mask:0xf")
    for sw in ["v_permlane16_swap_b32", "v_permlane32_swap_b32"]:
        for c in range(4):
            e(f"v_mov_b32 v{52+c}, v{48+c}")
        e("s_nop 1")
        for c in range(4):
            e(f"{sw} v{48+c}, v{52+c}")
        e("s_nop 1")
        for c in range(4):
            e(f"v_add_f32 v{48+c}, v{48+c}, v{52+c}")
    e("v_mov_b32 v56, s37")
    for c in range(4):
        div_precise(e, 52 + c, 48 + c, 56, 57, 58)
        rbf(e, 52 + c, 52 + c)
    e(f"""
    v_add_u32 v40, {L_O16}, v{VO}
    s_mov_b64 exec, 15
    ds_write_b128 v40, v[52:55]
    s_mov_b64 exec, -1
    """)
    e.label("K_noo16")
    e(f"""
    s_waitcnt lgkmcnt(0)
    s_barrier
    ds_read_b128 v[40:43], v7 offset:{L_O16}
    ds_read_b128 v[44:47], v7 offset:{L_O16+16}
    ds_read_b128 v[48:51], v7 offset:{L_O16+32}
    ds_read_b128 v[52:55], v7 offset:{L_O16+48}
    s_waitcnt lgkmcnt(0)
    v_mul_f32 v58, v40, v64
    """)
    for r in range(1, 16):
        e(f"v_fmac_f32 v58, v{40+r}, v{64+r}")
    e(f"""
    s_and_b32 s33, s2, {NREP1-1}
    s_mul_i32 s33, s33, 2304
    s_add_u32 s33, s33, {WS_ACC1}
    buffer_atomic_add_f32 v58, v6, s[20:23], s33 offen
    """)
    stamp()
    e(f"""
    v_mul_u32_u24 v41, 36, v1
    s_lshl_b32 s33, s26, 2
    s_add_u32 s33, s33, {L_W1}
    v_add_u32 v41, s33, v41
    """)
    for i in range(9):
        e(f"ds_read_b32 v{64+i}, v41 offset:{i*64*36}")
    for r in range(18):
        e(f"v_mov_b32 v{80+r}, 0")
    for r in range(18):
        e(f"ds_read_u16_d16_hi v{80+r}, v5 offset:{L_W2+r*1152}")
    e(f"""
    s_waitcnt vmcnt(0)
    s_barrier
    s_cmp_lg_u32 s26, 0
    s_cbranch_scc1 K_nocnt2
    s_and_b32 s34, s2, 15
    s_lshl_b32 s34, s34, 8
    s_add_u32 s34, s34, {WS_C2}
    v_mov_b32 v50, 1
    s_mov_b64 exec, 1
    buffer_atomic_add v50, v7, s[20:23], s34 offen
    s_mov_b64 exec, -1
    """)
    stamp()
    e(f"""
    v_and_b32 v42, 15, v1
    v_lshlrev_b32 v42, 8, v42
    s_mov_b32 s34, {WS_C2}
    s_mov_b32 s39, 0
    s_mov_b64 exec, 0xffff
    """)
    e.label("K_poll2")
    e(f"""
    buffer_load_dword v41, v42, s[20:23], s34 offen sc0 sc1
    s_waitcnt vmcnt(0)
    v_cmp_le_u32 vcc, 16, v41
    s_add_u32 s39, s39, 1
    s_nop 3
    s_cmp_eq_u64 vcc, exec
    s_cbranch_scc1 K_poll2d
    s_cmp_ge_u32 s39, {POLL_MAX}
    s_cbranch_scc1 K_poll2d
    """)
    sleep()
    e("s_branch K_poll2")
    e.label("K_poll2d")
    e("s_mov_b64 exec, -1")
    e.label("K_nocnt2")
    e("s_barrier")
    stamp()
    e(f"s_mov_b32 s33, {WS_ACC1}")
    for r in range(NREP1):
        e(f"buffer_load_dword v{40+r}, v6, s[20:23], s33 offen sc0 sc1")
        if r < NREP1 - 1:
            e("s_add_u32 s33, s33, 2304")
    e("s_waitcnt vmcnt(0)")
    n = NREP1
    while n > 1:
        hh = n // 2
        for r in range(hh):
            e(f"v_add_f32 v{40+r}, v{40+r}, v{40+r+hh}")
        n = hh
    rbf(e, 40, 40)
    e("v_lshlrev_b32 v2, 16, v2")
    e("v_add_f32 v2, v2, v40")
    rbf(e, 2, 2)
    e(f"""
    ds_write_b32 v6, v2 offset:{L_H}
    s_waitcnt lgkmcnt(0)
    s_barrier
    v_lshlrev_b32 v41, 2, v1
    """)
    stamp()
    XH = 14
    for i in range(9):
        e(f"ds_read_b32 v{XH+i}, v41 offset:{L_H+i*256}")
    e("s_waitcnt lgkmcnt(0)")
    TT = 23
    e(f"v_add_f32 v{TT}, v{XH}, v{XH+1}")
    for i in range(2, 9):
        e(f"v_add_f32 v{TT}, v{TT}, v{XH+i}")
    wave_reduce_to_sgpr(e, "v_add_f32", TT, 36)
    ln_mean(e, TT, 36)
    e(f"v_sub_f32 v{TT+1}, v{XH}, v{TT}")
    e(f"v_mul_f32 v{TT+2}, v{TT+1}, v{TT+1}")
    for i in range(1, 9):
        e(f"v_sub_f32 v{TT+1}, v{XH+i}, v{TT}")
        e(f"v_fmac_f32 v{TT+2}, v{TT+1}, v{TT+1}")
    wave_reduce_to_sgpr(e, "v_add_f32", TT + 2, 36)
    ln_finish_stats(e, TT, 36)
    for i in range(9):
        ln_apply(e, XH + i, XH + i, TT)
    e("v_mov_b32 v40, 0")
    e("v_mov_b32 v41, 0")
    for i in range(9):
        e(f"v_lshlrev_b32 v42, 16, v{64+i}")
        e(f"v_and_b32 v43, 0xffff0000, v{64+i}")
        e(f"v_fmac_f32 v40, v{XH+i}, v42")
        e(f"v_fmac_f32 v41, v{XH+i}, v43")
    wave_reduce_to_sgpr(e, "v_add_f32", 40, 36)
    wave_reduce_to_sgpr(e, "v_add_f32", 41, 37)
    e(f"""
    v_mov_b32 v40, s36
    v_mov_b32 v41, s37
    v_lshlrev_b32 v42, 16, v4
    v_and_b32 v43, 0xffff0000, v4
    """)
    for c in range(2):
        rbf(e, 40 + c, 40 + c)
        e(f"v_add_f32 v{40+c}, v{40+c}, v{42+c}")
        rbf(e, 40 + c, 40 + c)
        e(f"v_max_f32 v{40+c}, 0, v{40+c}")
        e(f"v_mul_f32 v{40+c}, v{40+c}, v{40+c}")
        rbf(e, 40 + c, 40 + c)
    e(f"""
    s_lshl_b32 s33, s26, 3
    s_add_u32 s33, s33, {L_H1}
    v_mov_b32 v42, s33
    s_mov_b64 exec, 1
    ds_write_b64 v42, v[40:41]
    s_mov_b64 exec, -1
    s_waitcnt lgkmcnt(0)
    s_barrier
    ds_read_b128 v[40:43], v7 offset:{L_H1}
    ds_read_b128 v[44:47], v7 offset:{L_H1+16}
    ds_read_b128 v[48:51], v7 offset:{L_H1+32}
    ds_read_b128 v[52:55], v7 offset:{L_H1+48}
    ds_read_b64 v[56:57], v7 offset:{L_H1+64}
    s_waitcnt lgkmcnt(0)
    v_mul_f32 v58, v40, v80
    """)
    for r in range(1, 18):
        e(f"v_fmac_f32 v58, v{40+r}, v{80+r}")
    e(f"""
    s_and_b32 s33, s2, {NREP2-1}
    s_mul_i32 s33, s33, 2304
    s_add_u32 s33, s33, {WS_ACC2}
    buffer_atomic_add_f32 v58, v6, s[20:23], s33 offen
    """)
    stamp()
    e(f"""
    s_waitcnt vmcnt(0)
    s_barrier
    s_cmp_lg_u32 s26, 0
    s_cbranch_scc1 K_nocnt3
    s_and_b32 s34, s2, 15
    s_lshl_b32 s34, s34, 8
    s_add_u32 s34, s34, {WS_C3}
    v_mov_b32 v50, 1
    s_mov_b64 exec, 1
    buffer_atomic_add v50, v7, s[20:23], s34 offen
    s_mov_b64 exec, -1
    """)
    stamp()
    e(f"""
    s_cmp_lg_u32 s2, 0
    s_cbranch_scc1 K_fin
    v_and_b32 v42, 15, v1
    v_lshlrev_b32 v42, 8, v42
    s_mov_b32 s34, {WS_C3}
    s_mov_b32 s39, 0
    s_mov_b64 exec, 0xffff
    """)
    e.label("K_poll3")
    e(f"""
    buffer_load_dword v41, v42, s[20:23], s34 offen sc0 sc1
    s_waitcnt vmcnt(0)
    v_cmp_le_u32 vcc, 16, v41
    s_add_u32 s39, s39, 1
    s_nop 3
    s_cmp_eq_u64 vcc, exec
    s_cbranch_scc1 K_poll3d
    s_cmp_lt_u32 s39, {POLL_MAX}
    s_cbranch_scc1 K_poll3
    """)
    e.label("K_poll3d")
    e("s_mov_b64 exec, -1")
    e.label("K_nocnt3")
    e(f"""
    s_cmp_lg_u32 s2, 0
    s_cbranch_scc1 K_end
    s_barrier
    s_mov_b32 s33, {WS_ACC2}
    """)
    for r in range(NREP2):
        e(f"buffer_load_dword v{40+r}, v6, s[20:23], s33 offen sc0 sc1")
        if r < NREP2 - 1:
            e("s_add_u32 s33, s33, 2304")
    e("s_waitcnt vmcnt(0)")
    n = NREP2
    while n > 1:
        hh = n // 2
        for r in range(hh):
            e(f"v_add_f32 v{40+r}, v{40+r}, v{40+r+hh}")
        n = hh
    rbf(e, 40, 40)
    e("v_lshlrev_b32 v3, 16, v3")
    e("v_add_f32 v40, v40, v3")
    rbf(e, 40, 40)
    e("v_add_f32 v40, v40, v2")
    e("v_cvt_pk_bf16_f32 v40, v40, v40")
    e("buffer_store_short v40, v5, s[96:99], 0 offen")
    stamp()
    e.label("K_fin")
    if DIAG:
        e(f"""
        s_cmp_lg_u32 s26, 0
        s_cbranch_scc1 K_end
        s_lshl_b32 s33, s2, 8
        s_add_u32 s33, s33, {WS_DIAG}
        v_lshlrev_b32 v41, 2, v1
        buffer_store_dword v39, v41, s[20:23], s33 offen
        """)
    e.label("K_end")
    e("s_endpgm")
    return name


def main():
    ref = open(f"cdna_kernels/{NAME}.s.ref").read().split("\n")
    head = [l for l in ref if l.startswith(";") and "@launch" not in l and "Override launch" not in l and "grid=ceil" not in l]
    out = list(head)
    out.append(f"; @launch kernel=fused_kernel grid=({NWG},1,1) block=(1024,1,1) lds={LDS_BYTES}")
    out.append('.amdgcn_target "amdgcn-amd-amdhsa--gfx950"')
    out.append(".text")
    e = E()
    gen(e)
    s = "\n".join(out) + "\n" + e.text()
    s += '.section .rodata,"a"\n.p2align 6\n'
    s += kernel_desc("fused_kernel", 128, 102)
    open(OUT, "w").write(s)
    print("wrote", OUT, len(s))


if __name__ == "__main__":
    main()
```

```python
import sys, re, os
sys.path.insert(0, os.path.dirname(os.path.abspath(__file__)))
from gen import (E, srd, rbf, DPP_ROW, row_allreduce, wave_reduce_to_sgpr, div_precise, kernel_header,
                 kernel_desc, ln_wave, ln_mean, ln_finish_stats, ln_apply, NAME, LOG2E, SCALE)

OUT = os.environ.get("OUT", f"cdna_kernels/{NAME}.s")
DIAG = int(os.environ.get("DIAG", "0"))
NREP1 = int(os.environ.get("NREP1", "8"))
NREP2 = int(os.environ.get("NREP2", "8"))
PB = int(os.environ.get("PB", "32"))
NSUB = 4
SLEEP = int(os.environ.get("SLEEP", "1"))
PACE = int(os.environ.get("PACE", "1"))
WPACE = int(os.environ.get("WPACE", "4"))
WDELAY = int(os.environ.get("WDELAY", "0"))
SDELAY = int(os.environ.get("SDELAY", "0"))
FSLEEP = int(os.environ.get("FSLEEP", "3"))
NB = int(os.environ.get("NB", "3"))
POLL_MAX = int(os.environ.get("POLL_MAX", str(0x200000)))
NSTR = 4
NW = 9
HWV = 4
NWW = 4
NT = " nt"
SLOC = 256 - PB
LPB = PB.bit_length() - 1
PTOT = 16 * PB

WS_Q = 0
WS_ML = 65536
WS_CP = 73728
WS_C2 = WS_CP + 16 * NSUB * 256
WS_C3 = WS_C2 + 4096
WS_ACC1 = WS_C3 + 4096
WS_ACC2 = WS_ACC1 + NREP1 * 2304
WS_O = 262144
WS_DIAG = 1 << 20
WS_SIZE = 0x40000000
OOB = 0x7fff0000

L_WO = 0
L_W2 = 18432
L_W1 = L_W2 + 21504
L_Q = L_W1 + 20736
L_CNT = L_Q + 512
L_FLAG = L_CNT + 16
L_O16 = L_CNT + 64
L_H = 62848
L_H1 = L_H + 2304
L_CMB = 65536
L_MB = L_CMB + 16384
LDS_BYTES = L_MB + 1024

NWG = 256
U = 4
NVG = 64 + 32 * NB + 2
NVGA = (NVG + 7) // 8 * 8
assert NVGA <= 168


def gen(e):
    name = "fused_kernel"
    kernel_header(e, name)
    Q = 2
    M = 10
    L = 12
    O = 14
    S = 30
    VO = 38
    T = 40
    MX = 56
    AL = 58
    VG = [60, 61, 62, 63]
    KB = [64 + 32 * b for b in range(NB)]
    VB = [80 + 32 * b for b in range(NB)]
    LCA = 64 + 32 * NB
    LRES = LCA + 1
    CUR = [32, 33, 34, 35]
    NXT = [44, 45, 46, 47]

    def stamp(k):
        if not DIAG:
            return
        e(f"""
        s_memrealtime s[8:9]
        s_waitcnt lgkmcnt(0)
        v_writelane_b32 v39, s8, {k}
        """)

    def sleep():
        if SLEEP:
            e(f"s_sleep {SLEEP}")

    e(f"""
    s_cmp_ge_u32 s2, {NWG}
    s_cbranch_scc1 K_end
    s_load_dwordx4 s[40:43], s[0:1], 0
    s_load_dwordx4 s[44:47], s[0:1], 16
    s_load_dwordx2 s[48:49], s[0:1], 32
    s_load_dwordx4 s[52:55], s[0:1], 48
    s_load_dwordx4 s[56:59], s[0:1], 64
    s_load_dwordx4 s[60:63], s[0:1], 80
    s_load_dwordx2 s[64:65], s[0:1], 96
    v_and_b32 v1, 63, v0
    v_lshrrev_b32 v39, 6, v0
    v_lshlrev_b32 v{VO}, 4, v1
    v_readfirstlane_b32 s26, v39
    s_mov_b32 s29, {SCALE}
    s_mov_b32 s30, {LOG2E}
    s_lshr_b32 s24, s2, 4
    s_and_b32 s25, s2, 15
    s_and_b32 s3, s2, 7
    s_lshr_b32 s4, s2, 3
    s_lshl_b32 s28, s3, 5
    s_add_u32 s28, s28, s4
    s_lshl_b32 s27, s2, 20
    s_lshl_b32 s10, s24, 24
    v_mov_b32 v{LCA}, {L_CNT}
    v_mov_b32 v40, {2*NSTR*NB}
    v_mov_b32 v41, 0
    ds_write_b32 v{LCA}, v40
    ds_write_b32 v{LCA}, v41 offset:16
    s_waitcnt lgkmcnt(0)
    s_barrier
    """)
    if DIAG:
        e("v_mov_b32 v39, 0")
    stamp(0)
    srd(e, 12, 42, 0x10000000)
    srd(e, 16, 44, 0x10000000)
    srd(e, 20, 64, WS_SIZE)
    srd(e, 68, 40, 1152)
    srd(e, 72, 46, 576 * 8192)
    srd(e, 76, 48, 4096 * 1152)
    srd(e, 80, 52, 576 * 9216)
    srd(e, 84, 56, 4608 * 1152)
    srd(e, 88, 54, 9216)
    srd(e, 92, 58, 1152)
    srd(e, 96, 60, 1152)
    srd(e, 4, 62, 256)
    e(f"""
    s_cmp_eq_u32 s26, {HWV}
    s_cbranch_scc1 K_helper
    s_cmp_gt_u32 s26, {HWV}
    s_cbranch_scc1 K_wts
    """)

    def loadK(buf, soff):
        for u in range(U):
            e(f"buffer_load_dwordx4 v[{KB[buf]+4*u}:{KB[buf]+4*u+3}], v{VO}, s[12:15], s{soff} offen offset:{u*1024}{NT}")

    def loadV(buf, soff):
        for u in range(U):
            e(f"buffer_load_dwordx4 v[{VB[buf]+4*u}:{VB[buf]+4*u+3}], v{VO}, s[16:19], s{soff} offen offset:{u*1024}{NT}")

    def atom(buf, soff):
        e(f"""
        v_mov_b32 v{VG[buf]}, 1
        s_mov_b64 exec, 1
        buffer_atomic_add v{VG[buf]}, off, s[20:23], s{soff} sc0
        s_mov_b64 exec, -1
        """)

    e(f"""
    s_mul_i32 s3, s24, {NSUB}
    s_add_u32 s11, s26, s3
    s_lshl_b32 s11, s11, 8
    s_add_u32 s11, s11, {WS_CP}
    s_mov_b32 s31, s26
    s_lshl_b32 s36, s26, 12
    s_add_u32 s36, s36, s27
    s_mov_b32 s3, {OOB}
    """)
    for b in range(NB):
        e(f"s_add_u32 s{CUR[b]}, s36, {b*NSTR*4096}")
        e(f"s_add_u32 s{NXT[b]}, s36, {(NB+b)*NSTR*4096}")
    if SDELAY:
        e(f"s_sleep {SDELAY}")
    npw = [0]

    def pacewait():
        k = npw[0]
        npw[0] += 1
        e(f"""
        ds_read_b32 v40, v{LCA} offset:16
        s_waitcnt lgkmcnt(0)
        v_readfirstlane_b32 s36, v40
        s_nop 3
        s_cmp_lg_u32 s36, 0
        s_cbranch_scc1 K_pw{k}
        s_waitcnt vmcnt(0)
        """)
        e.label(f"K_pw{k}")
    for b in range(NB):
        atom(b, 3)
        loadK(b, CUR[b])
        if PACE == 2:
            pacewait()
        loadV(b, CUR[b])
        if PACE and b < NB - 1:
            pacewait()
    e.label("K_wq")
    e(f"""
    ds_read_b32 v40, v{LCA} offset:16
    s_waitcnt lgkmcnt(0)
    v_readfirstlane_b32 s36, v40
    s_nop 3
    s_cmp_lg_u32 s36, 0
    s_cbranch_scc1 K_wqok
    s_sleep 1
    s_branch K_wq
    """)
    e.label("K_wqok")
    stamp(1)
    e(f"""
    v_and_b32 v40, 15, v1
    v_lshlrev_b32 v40, 4, v40
    v_add_u32 v40, {L_Q}, v40
    ds_read_b128 v[{Q}:{Q+3}], v40
    ds_read_b128 v[{Q+4}:{Q+7}], v40 offset:256
    v_mov_b32 v{M}, 0xff800000
    v_mov_b32 v{M+1}, 0xff800000
    v_mov_b32 v{L}, 0
    v_mov_b32 v{L+1}, 0
    s_mov_b32 s66, 0
    """)
    for i in range(16):
        e(f"v_mov_b32 v{O+i}, 0")
    e("s_waitcnt lgkmcnt(0)")

    def scores(buf):
        kb = KB[buf]
        for j in range(4):
            for u in range(U):
                for h in range(2):
                    if j == 0:
                        e(f"v_dot2_f32_bf16 v{S+2*u+h}, v{kb+4*u}, v{Q+4*h}, 0")
                    else:
                        e(f"v_dot2c_f32_bf16 v{S+2*u+h}, v{kb+4*u+j}, v{Q+4*h+j}")

    def softmax_part():
        for c in DPP_ROW:
            for k in range(2 * U):
                e(f"v_add_f32_dpp v{S+k}, v{S+k}, v{S+k} {c} row_mask:0xf bank_mask:0xf")
        for u in range(U):
            e(f"v_cvt_pk_bf16_f32 v{T+u}, v{S+2*u}, v{S+2*u+1}")
        for u in range(U):
            e(f"v_lshlrev_b32 v{S+2*u}, 16, v{T+u}")
            e(f"v_and_b32 v{S+2*u+1}, 0xffff0000, v{T+u}")
        for k in range(2 * U):
            e(f"v_mul_f32 v{S+k}, s29, v{S+k}")
        for u in range(U):
            e(f"v_cvt_pk_bf16_f32 v{T+u}, v{S+2*u}, v{S+2*u+1}")
        for u in range(U):
            e(f"v_lshlrev_b32 v{S+2*u}, 16, v{T+u}")
            e(f"v_and_b32 v{S+2*u+1}, 0xffff0000, v{T+u}")
        for h in range(2):
            e(f"v_max3_f32 v{MX+h}, v{M+h}, v{S+h}, v{S+2+h}")
        for h in range(2):
            e(f"v_max3_f32 v{MX+h}, v{MX+h}, v{S+4+h}, v{S+6+h}")
        for h in range(2):
            e(f"v_sub_f32 v{AL+h}, v{M+h}, v{MX+h}")
        for k in range(2 * U):
            e(f"v_sub_f32 v{S+k}, v{S+k}, v{MX+(k&1)}")
        for h in range(2):
            e(f"v_mul_f32 v{AL+h}, s30, v{AL+h}")
        for k in range(2 * U):
            e(f"v_mul_f32 v{S+k}, s30, v{S+k}")
        for h in range(2):
            e(f"v_exp_f32 v{AL+h}, v{AL+h}")
        for k in range(2 * U):
            e(f"v_exp_f32 v{S+k}, v{S+k}")
        for h in range(2):
            e(f"v_mov_b32 v{M+h}, v{MX+h}")
        for h in range(2):
            e(f"v_mul_f32 v{L+h}, v{L+h}, v{AL+h}")
        for h in range(2):
            for i in range(8):
                e(f"v_mul_f32 v{O+8*h+i}, v{O+8*h+i}, v{AL+h}")
        for u in range(U):
            for h in range(2):
                e(f"v_add_f32 v{L+h}, v{L+h}, v{S+2*u+h}")

    def pv(buf):
        vb = VB[buf]
        for u in range(U):
            t = T + 8 * (u & 1)
            for j in range(4):
                e(f"v_lshlrev_b32 v{t+2*j}, 16, v{vb+4*u+j}")
                e(f"v_and_b32 v{t+2*j+1}, 0xffff0000, v{vb+4*u+j}")
            for h in range(2):
                for i in range(8):
                    e(f"v_fmac_f32 v{O+8*h+i}, v{S+2*u+h}, v{t+i}")

    e.label("K_loop")
    for buf in range(NB):
        cur = CUR[buf]
        nxt = NXT[buf]
        e(f"""
        s_cmp_eq_u32 s{cur}, {OOB}
        s_cbranch_scc1 K_done
        v_mov_b32 v{LRES}, 1
        s_mov_b64 exec, 1
        ds_add_rtn_u32 v{LRES}, v{LCA}, v{LRES}
        s_mov_b64 exec, -1
        s_waitcnt vmcnt({9*NB-5})
        v_readfirstlane_b32 s36, v{VG[buf]}
        """)
        scores(buf)
        e(f"""
        s_mul_i32 s36, s36, {NSUB}
        s_add_u32 s36, s36, s31
        s_lshr_b32 s37, s36, {LPB}
        s_lshl_b32 s37, s37, 20
        s_and_b32 s38, s36, {PB-1}
        s_add_u32 s38, s38, {SLOC}
        s_lshl_b32 s38, s38, 12
        s_add_u32 s37, s37, s38
        s_add_u32 s37, s37, s10
        s_cmp_lt_u32 s36, {PTOT}
        s_cselect_b32 s37, s37, {OOB}
        s_cmp_eq_u32 s{nxt}, -1
        s_cselect_b32 s{cur}, s37, s{nxt}
        s_waitcnt lgkmcnt(0)
        v_readfirstlane_b32 s36, v{LRES}
        s_nop 3
        s_lshl_b32 s37, s36, 12
        s_add_u32 s37, s37, s27
        s_cmp_lt_u32 s36, {SLOC}
        s_cselect_b32 s{nxt}, s37, -1
        s_cselect_b32 s3, {OOB}, s11
        """)
        if DIAG:
            e("s_add_u32 s66, s66, 1")
        atom(buf, 3)
        loadK(buf, cur)
        softmax_part()
        e(f"s_waitcnt vmcnt({9*NB-4})")
        pv(buf)
        loadV(buf, cur)
    e("s_branch K_loop")
    e.label("K_done")
    stamp(2)
    if DIAG:
        e(f"""
        v_mov_b32 v40, s8
        v_mov_b32 v41, s66
        s_lshl_b32 s33, s2, 7
        s_lshl_b32 s34, s26, 3
        s_add_u32 s33, s33, s34
        s_add_u32 s33, s33, {WS_DIAG + 65536}
        s_mov_b64 exec, 1
        buffer_store_dwordx2 v[40:41], off, s[20:23], s33
        s_mov_b64 exec, -1
        """)
    e(f"""
    v_lshrrev_b32 v40, 4, v0
    v_and_b32 v41, 15, v1
    v_lshlrev_b32 v42, 10, v40
    v_lshl_add_u32 v42, v41, 5, v42
    v_add_u32 v42, {L_CMB}, v42
    ds_write_b128 v42, v[{O}:{O+3}]
    ds_write_b128 v42, v[{O+4}:{O+7}] offset:16
    ds_write_b128 v42, v[{O+8}:{O+11}] offset:512
    ds_write_b128 v42, v[{O+12}:{O+15}] offset:528
    v_lshlrev_b32 v43, 2, v40
    v_add_u32 v43, {L_MB}, v43
    ds_write_b32 v43, v{M}
    ds_write_b32 v43, v{M+1} offset:256
    ds_write_b32 v43, v{L} offset:512
    ds_write_b32 v43, v{L+1} offset:768
    s_branch K_tail
    """)

    e.label("K_wts")
    TZ = WS_C2
    TZB = (WS_ACC2 + NREP2 * 2304 - TZ + 16 * 1024 - 1) // (16 * 1024) * 1024
    assert TZ + 16 * TZB <= WS_O
    e(f"""
    s_sub_u32 s31, s26, {HWV+1}
    s_cmp_lg_u32 s25, 0
    s_cbranch_scc1 K_noinit
    s_cmp_lg_u32 s31, 0
    s_cbranch_scc1 K_noinit
    v_mov_b32 v40, -1
    v_mov_b32 v41, -1
    v_mov_b32 v42, -1
    v_mov_b32 v43, -1
    v_mov_b32 v44, 0
    v_mov_b32 v45, 0
    v_mov_b32 v46, 0
    v_mov_b32 v47, 0
    s_lshl_b32 s32, s24, 12
    s_mul_i32 s33, s24, {NSUB*256}
    s_add_u32 s33, s33, {WS_CP}
    buffer_load_dword v48, off, s[4:7], 0 offset:192
    """)
    for i in range(4):
        e(f"buffer_store_dwordx4 v[40:43], v{VO}, s[20:23], s32 offen offset:{WS_Q+i*1024} sc0 sc1")
    e(f"buffer_store_dwordx4 v[44:47], v{VO}, s[20:23], s33 offen sc0 sc1")
    e(f"""
    s_mul_i32 s33, s24, {TZB}
    s_add_u32 s33, s33, {TZ}
    s_lshl_b32 s32, s24, 2
    v_mov_b32 v40, 1
    s_waitcnt vmcnt(0)
    s_mov_b64 exec, 1
    buffer_store_dword v40, off, s[4:7], s32 sc0 sc1
    s_mov_b64 exec, -1
    """)
    for i in range(TZB // 1024):
        e(f"buffer_store_dwordx4 v[44:47], v{VO}, s[20:23], s33 offen offset:{i*1024} sc0 sc1")
    e(f"""
    s_waitcnt vmcnt(0)
    s_mov_b64 exec, 1
    buffer_store_dword v40, off, s[4:7], s32 offset:128 sc0 sc1
    s_mov_b64 exec, -1
    """)
    e.label("K_noinit")
    if WDELAY:
        e(f"s_sleep {WDELAY}")
    cnt = [0]

    def wpace(n):
        cnt[0] += n
        if WPACE and cnt[0] >= WPACE * 4:
            e("s_waitcnt vmcnt(0)")
            cnt[0] = 0

    def wtasks(lbl, ntask, srdn, base_code, ldsbase):
        e(base_code)
        e(f"""
        s_lshl_b32 s37, s31, 10
        s_add_u32 s36, s36, s37
        s_add_u32 s38, s37, {ldsbase}
        """)
        k = 0
        while k * NWW < ntask:
            if (k + 1) * NWW > ntask:
                e(f"s_cmp_ge_u32 s31, {ntask - k*NWW}")
                e(f"s_cbranch_scc1 {lbl}")
            e(f"""
            s_mov_b32 m0, s38
            s_nop 0
            buffer_load_dwordx4 v{VO}, s[{srdn}:{srdn+3}], s36 offen lds
            s_add_u32 s36, s36, {NWW*1024}
            s_add_u32 s38, s38, {NWW*1024}
            """)
            wpace(4)
            k += 1
        e.label(lbl)
    wtasks("K_wo_done", 18, 76, f"""
    s_lshl_b32 s36, s24, 4
    s_add_u32 s36, s36, s25
    s_mul_i32 s36, s36, {16*1152}
    """, L_WO)
    wtasks("K_w2_done", 21, 84, "s_mul_i32 s36, s28, 20736", L_W2)
    e(f"""
    s_mul_i32 s36, s28, 36
    s_lshl_b32 s37, s31, 8
    s_add_u32 s38, s37, {L_W1}
    s_movk_i32 s39, 9216
    v_subrev_u32 v30, {(HWV+1)*64}, v0
    """)
    k = 0
    while k * NWW < 81:
        if (k + 1) * NWW > 81:
            e(f"s_cmp_ge_u32 s31, {81 - k*NWW}")
            e("s_cbranch_scc1 K_w1_done")
        e(f"""
        v_add_u32 v31, {k*NWW*64}, v30
        v_mul_u32_u24 v32, 7282, v31
        v_lshrrev_b32 v32, 16, v32
        v_mul_u32_u24 v33, 9, v32
        v_sub_u32 v33, v31, v33
        v_mul_u32_u24 v32, s39, v32
        v_lshl_add_u32 v32, v33, 2, v32
        s_mov_b32 m0, s38
        s_add_u32 s38, s38, {NWW*256}
        buffer_load_dword v32, s[80:83], s36 offen lds
        """)
        wpace(2)
        k += 1
    e.label("K_w1_done")
    e("s_branch K_tail")

    e.label("K_helper")
    X = 14
    WR = 64
    LNV = 40
    e("v_lshlrev_b32 v40, 1, v1")
    for i in range(9):
        e(f"buffer_load_ushort v{X+i}, v40, s[68:71], 0 offen offset:{i*128}")
    e(f"""
    v_lshrrev_b32 v41, 3, v1
    v_mul_u32_u24 v40, {18*8192}, v41
    v_and_b32 v42, 7, v1
    v_lshl_add_u32 v40, v42, 4, v40
    s_lshr_b32 s33, s25, 2
    s_and_b32 s34, s25, 3
    s_mul_i32 s32, s33, {144*8192}
    s_lshl_b32 s35, s24, 9
    s_add_u32 s32, s32, s35
    s_lshl_b32 s35, s34, 7
    s_add_u32 s32, s32, s35
    """)
    for i in range(18):
        e(f"buffer_load_dwordx4 v[{WR+4*i}:{WR+4*i+3}], v40, s[72:75], s32 offen")
        if i < 17:
            e("s_add_u32 s32, s32, 0x2000")
    e(f"""
    v_mul_u32_u24 v34, 72, v41
    s_mul_i32 s35, s33, 576
    s_add_u32 s35, s35, {L_H}
    v_add_u32 v34, s35, v34
    """)
    e(f"""
    v_mov_b32 v40, -1
    v_mov_b32 v41, -1
    v_lshrrev_b32 v42, 4, v1
    v_lshlrev_b32 v42, 10, v42
    v_and_b32 v43, 15, v1
    v_lshl_add_u32 v42, v43, 2, v42
    s_lshl_b32 s36, s24, 14
    s_lshl_b32 s37, s25, 6
    s_add_u32 s36, s36, s37
    s_add_u32 s36, s36, {WS_O}
    buffer_store_dword v40, v42, s[20:23], s36 offen sc0 sc1
    s_add_u32 s36, s36, 4096
    buffer_store_dword v40, v42, s[20:23], s36 offen sc0 sc1
    s_add_u32 s36, s36, 4096
    buffer_store_dword v40, v42, s[20:23], s36 offen sc0 sc1
    s_add_u32 s36, s36, 4096
    buffer_store_dword v40, v42, s[20:23], s36 offen sc0 sc1
    s_lshl_b32 s36, s24, 8
    s_lshl_b32 s37, s25, 3
    s_add_u32 s36, s36, s37
    s_add_u32 s36, s36, {WS_ML}
    s_mov_b64 exec, 1
    buffer_store_dwordx2 v[40:41], off, s[20:23], s36 sc0 sc1
    buffer_store_dwordx2 v[40:41], off, s[20:23], s36 offset:128 sc0 sc1
    s_mov_b64 exec, -1
    s_lshl_b32 s66, s24, 2
    buffer_load_dword v37, off, s[4:7], 0 offset:192
    s_waitcnt vmcnt(25)
    """)
    stamp(1)
    ln_wave(e, X=X, LN=X, T=23, S=36)
    e("v_lshlrev_b32 v40, 2, v1")
    for i in range(9):
        e(f"ds_write_b32 v40, v{X+i} offset:{L_H+i*256}")
    e("s_waitcnt lgkmcnt(0)")
    for i in range(9):
        e(f"ds_read_b64 v[{LNV+2*i}:{LNV+2*i+1}], v34 offset:{i*8}")
    ACC = list(range(2, 10))
    for c in range(8):
        e(f"v_mov_b32 v{ACC[c]}, 0")
    e("s_waitcnt vmcnt(0) lgkmcnt(0)")
    stamp(2)
    e("buffer_load_dword v36, off, s[4:7], s66 sc0 sc1")
    for i in range(18):
        for j in range(4):
            w = WR + 4 * i + j
            e(f"v_lshlrev_b32 v{10+(j&1)*2}, 16, v{w}")
            e(f"v_and_b32 v{11+(j&1)*2}, 0xffff0000, v{w}")
            e(f"v_fmac_f32 v{ACC[2*j]}, v{LNV+i}, v{10+(j&1)*2}")
            e(f"v_fmac_f32 v{ACC[2*j+1]}, v{LNV+i}, v{11+(j&1)*2}")
    e("s_nop 1")
    for c in range(4):
        e(f"v_permlane32_swap_b32 v{ACC[c]}, v{ACC[c+4]}")
    e("s_nop 1")
    for c in range(4):
        e(f"v_add_f32 v{ACC[c]}, v{ACC[c]}, v{ACC[c+4]}")
    e("s_nop 1")
    for c in range(2):
        e(f"v_permlane16_swap_b32 v{ACC[c]}, v{ACC[c+2]}")
    e("s_nop 1")
    for c in range(2):
        e(f"v_add_f32 v{ACC[c]}, v{ACC[c]}, v{ACC[c+2]}")
    e("s_nop 1")
    for c in range(2):
        e(f"v_add_f32_dpp v{ACC[c]}, v{ACC[c]}, v{ACC[c]} row_ror:8 row_mask:0xf bank_mask:0xf")
    e(f"""
    v_and_b32 v40, 7, v1
    v_lshlrev_b32 v40, 5, v40
    v_lshrrev_b32 v41, 4, v1
    v_lshl_add_u32 v40, v41, 3, v40
    v_and_b32 v43, 8, v1
    s_lshl_b32 s32, s24, 12
    s_lshl_b32 s35, s33, 10
    s_add_u32 s35, s35, s32
    s_lshl_b32 s34, s34, 8
    s_add_u32 s35, s35, s34
    s_mov_b32 s39, 0
    """)
    e.label("K_flagchk")
    e(f"""
    s_waitcnt vmcnt(0)
    v_readfirstlane_b32 s36, v36
    s_add_u32 s39, s39, 1
    s_nop 3
    s_cmp_lg_u32 s36, 0
    s_cbranch_scc1 K_flagok
    s_cmp_ge_u32 s39, {POLL_MAX}
    s_cbranch_scc1 K_flagok
    s_sleep {FSLEEP}
    buffer_load_dword v36, off, s[4:7], s66 sc0 sc1
    s_branch K_flagchk
    """)
    e.label("K_flagok")
    e(f"""
    v_cmp_eq_u32 vcc, 0, v43
    s_and_saveexec_b64 s[36:37], vcc
    buffer_store_dwordx2 v[{ACC[0]}:{ACC[1]}], v40, s[20:23], s35 offen offset:{WS_Q} sc0 sc1
    s_mov_b64 exec, -1
    s_mov_b32 s39, 0
    """)
    stamp(3)
    e.label("K_qpoll")
    for r in range(4):
        e(f"buffer_load_dwordx4 v[{44+4*r}:{47+4*r}], v{VO}, s[20:23], s32 offen offset:{WS_Q+r*1024} sc0 sc1")
    e("s_waitcnt vmcnt(0)")
    e("v_max3_u32 v60, v44, v45, v46")
    for r in range(47, 59, 2):
        e(f"v_max3_u32 v60, v60, v{r}, v{r+1}")
    e(f"""
    v_max_u32 v60, v60, v59
    v_cmp_ne_u32 vcc, -1, v60
    s_add_u32 s39, s39, 1
    s_nop 3
    s_cmp_eq_u64 vcc, exec
    s_cbranch_scc1 K_qok
    s_cmp_ge_u32 s39, {POLL_MAX}
    s_cbranch_scc1 K_qok
    """)
    sleep()
    e("s_branch K_qpoll")
    e.label("K_qok")
    for c in range(4):
        e(f"v_add_f32 v{44+c}, v{44+c}, v{48+c}")
        e(f"v_add_f32 v{52+c}, v{52+c}, v{56+c}")
    for c in range(4):
        e(f"v_add_f32 v{44+c}, v{44+c}, v{52+c}")
    e(f"""
    v_cvt_pk_bf16_f32 v40, v44, v45
    v_cvt_pk_bf16_f32 v41, v46, v47
    v_lshlrev_b32 v42, 3, v1
    v_mov_b32 v43, 1
    ds_write_b64 v42, v[40:41] offset:{L_Q}
    s_waitcnt lgkmcnt(0)
    ds_write_b32 v{LCA}, v43 offset:16
    v_lshlrev_b32 v42, 2, v1
    s_mov_b32 s39, 0
    """)
    stamp(4)
    e("s_mov_b64 exec, 0xffff")
    e("s_sleep 100")
    e.label("K_fbpoll")
    e(f"""
    buffer_load_dword v44, v42, s[4:7], 0 offen offset:128 sc0 sc1
    s_waitcnt vmcnt(0)
    v_cmp_ne_u32 vcc, 0, v44
    s_add_u32 s39, s39, 1
    s_nop 3
    s_cmp_eq_u64 vcc, exec
    s_cbranch_scc1 K_fbok
    s_cmp_ge_u32 s39, {POLL_MAX}
    s_cbranch_scc1 K_fbok
    s_sleep 32
    s_branch K_fbpoll
    """)
    e.label("K_fbok")
    e("s_mov_b64 exec, -1")
    stamp(5)
    if DIAG:
        e(f"""
        s_lshl_b32 s36, s2, 8
        s_add_u32 s36, s36, {WS_DIAG + 131072}
        v_lshlrev_b32 v41, 2, v1
        buffer_store_dword v39, v41, s[20:23], s36 offen
        """)

    e.label("K_tail")
    e(f"""
    v_lshlrev_b32 v5, 1, v0
    v_lshlrev_b32 v6, 2, v0
    v_mov_b32 v7, 0
    buffer_load_ushort v2, v5, s[68:71], 0 offen
    buffer_load_ushort v3, v5, s[92:95], 0 offen
    s_mul_i32 s32, s28, 36
    s_lshl_b32 s33, s26, 2
    s_add_u32 s32, s32, s33
    buffer_load_dword v4, v7, s[88:91], s32 offen
    s_waitcnt vmcnt(0) lgkmcnt(0)
    s_barrier
    """)
    stamp(3 if True else 0)
    e(f"""
    s_cmp_ge_u32 s26, 4
    s_cbranch_scc1 K_nocomb
    s_lshr_b32 s31, s26, 1
    s_and_b32 s32, s26, 1
    s_lshl_b32 s33, s31, 8
    v_lshlrev_b32 v43, 2, v1
    v_add_u32 v43, s33, v43
    v_add_u32 v43, {L_MB}, v43
    ds_read_b32 v44, v43
    ds_read_b32 v45, v43 offset:512
    s_lshl_b32 s33, s31, 9
    s_lshl_b32 s34, s32, 8
    s_add_u32 s33, s33, s34
    s_add_u32 s33, s33, {L_CMB}
    v_lshlrev_b32 v46, 2, v1
    v_add_u32 v46, s33, v46
    """)
    NG = 4 * NSTR
    for g in range(NG):
        e(f"ds_read_b32 v{64+g}, v46 offset:{g*1024}")
    e("s_waitcnt lgkmcnt(0)")
    e(f"""
    v_cmp_gt_u32 vcc, {NG}, v1
    v_mov_b32 v47, 0xff800000
    v_cndmask_b32 v44, v47, v44, vcc
    v_cndmask_b32 v45, 0, v45, vcc
    v_mov_b32 v47, v44
    """)
    wave_reduce_to_sgpr(e, "v_max_f32", 47, 36)
    e(f"""
    v_subrev_f32 v47, s36, v44
    v_mul_f32 v47, s30, v47
    v_exp_f32 v47, v47
    s_nop 0
    v_mul_f32 v48, v47, v45
    """)
    wave_reduce_to_sgpr(e, "v_add_f32", 48, 37)
    e("v_mov_b32 v49, 0")
    for g in range(NG):
        e(f"v_readlane_b32 s{40+(g&3)}, v47, {g}")
        if (g & 3) == 3:
            e("s_nop 1")
            for k in range(4):
                e(f"v_fmac_f32 v49, s{40+k}, v{64+g-3+k}")
    e(f"""
    s_lshl_b32 s33, s24, 1
    s_add_u32 s33, s33, s31
    s_lshl_b32 s34, s33, 13
    s_lshl_b32 s35, s32, 12
    s_add_u32 s34, s34, s35
    s_lshl_b32 s35, s25, 6
    s_add_u32 s34, s34, s35
    s_add_u32 s34, s34, {WS_O}
    v_lshrrev_b32 v46, 4, v1
    v_lshlrev_b32 v46, 10, v46
    v_and_b32 v50, 15, v1
    v_lshl_add_u32 v46, v50, 2, v46
    buffer_store_dword v49, v46, s[20:23], s34 offen sc0 sc1
    s_cmp_lg_u32 s32, 0
    s_cbranch_scc1 K_nocomb
    s_lshl_b32 s34, s33, 4
    s_add_u32 s34, s34, s25
    s_lshl_b32 s34, s34, 3
    s_add_u32 s34, s34, {WS_ML}
    v_mov_b32 v50, s36
    v_mov_b32 v51, s37
    s_mov_b64 exec, 1
    buffer_store_dwordx2 v[50:51], v7, s[20:23], s34 offen sc0 sc1
    s_mov_b64 exec, -1
    """)
    e.label("K_nocomb")
    for r in range(16):
        e(f"v_mov_b32 v{64+r}, 0")
    for r in range(16):
        e(f"ds_read_u16_d16_hi v{64+r}, v5 offset:{L_WO+r*1152}")
    e(f"""
    s_cmp_lg_u32 s26, 4
    s_cbranch_scc1 K_noo16
    s_lshl_b32 s33, s24, 1
    s_lshr_b32 s34, s25, 3
    s_add_u32 s33, s33, s34
    s_lshl_b32 s32, s33, 7
    s_add_u32 s32, s32, {WS_ML}
    v_lshrrev_b32 v40, 2, v1
    v_lshlrev_b32 v40, 3, v40
    s_lshl_b32 s33, s33, 3
    s_and_b32 s34, s25, 7
    s_add_u32 s33, s33, s34
    s_lshl_b32 s33, s33, 10
    s_add_u32 s33, s33, {WS_O}
    s_mov_b32 s39, 0
    """)
    e.label("K_poll1")
    e(f"""
    buffer_load_dwordx2 v[44:45], v40, s[20:23], s32 offen sc0 sc1
    buffer_load_dwordx4 v[48:51], v{VO}, s[20:23], s33 offen sc0 sc1
    s_waitcnt vmcnt(0)
    v_max3_u32 v52, v44, v45, v48
    v_max3_u32 v52, v52, v49, v50
    v_max_u32 v52, v52, v51
    v_cmp_ne_u32 vcc, -1, v52
    s_add_u32 s39, s39, 1
    s_nop 3
    s_cmp_eq_u64 vcc, exec
    s_cbranch_scc1 K_poll1d
    s_cmp_ge_u32 s39, {POLL_MAX}
    s_cbranch_scc1 K_poll1d
    """)
    sleep()
    e("s_branch K_poll1")
    e.label("K_poll1d")
    e("v_mov_b32 v47, v44")
    wave_reduce_to_sgpr(e, "v_max_f32", 47, 36)
    e(f"""
    v_subrev_f32 v47, s36, v44
    v_mul_f32 v47, s30, v47
    v_exp_f32 v47, v47
    s_nop 0
    v_mul_f32 v52, v47, v45
    v_mul_f32 v52, 0.25, v52
    """)
    wave_reduce_to_sgpr(e, "v_add_f32", 52, 37)
    for c in range(4):
        e(f"v_mul_f32 v{48+c}, v{48+c}, v47")
    for d in ["row_ror:4", "row_ror:8"]:
        e("s_nop 1")
        for c in range(4):
            e(f"v_add_f32_dpp v{48+c}, v{48+c}, v{48+c} {d} row_mask:0xf bank_mask:0xf")
    for sw in ["v_permlane16_swap_b32", "v_permlane32_swap_b32"]:
        for c in range(4):
            e(f"v_mov_b32 v{52+c}, v{48+c}")
        e("s_nop 1")
        for c in range(4):
            e(f"{sw} v{48+c}, v{52+c}")
        e("s_nop 1")
        for c in range(4):
            e(f"v_add_f32 v{48+c}, v{48+c}, v{52+c}")
    e("v_mov_b32 v56, s37")
    for c in range(4):
        div_precise(e, 52 + c, 48 + c, 56, 57, 58)
        rbf(e, 52 + c, 52 + c)
    e(f"""
    v_add_u32 v40, {L_O16}, v{VO}
    s_mov_b64 exec, 15
    ds_write_b128 v40, v[52:55]
    s_mov_b64 exec, -1
    """)
    e.label("K_noo16")
    e(f"""
    s_waitcnt lgkmcnt(0)
    s_barrier
    ds_read_b128 v[40:43], v7 offset:{L_O16}
    ds_read_b128 v[44:47], v7 offset:{L_O16+16}
    ds_read_b128 v[48:51], v7 offset:{L_O16+32}
    ds_read_b128 v[52:55], v7 offset:{L_O16+48}
    s_waitcnt lgkmcnt(0)
    v_mul_f32 v58, v40, v64
    """)
    for r in range(1, 16):
        e(f"v_fmac_f32 v58, v{40+r}, v{64+r}")
    e(f"""
    s_and_b32 s33, s2, {NREP1-1}
    s_mul_i32 s33, s33, 2304
    s_add_u32 s33, s33, {WS_ACC1}
    buffer_atomic_add_f32 v58, v6, s[20:23], s33 offen
    """)
    stamp(4)
    e(f"""
    v_mul_u32_u24 v41, 36, v1
    s_lshl_b32 s33, s26, 2
    s_add_u32 s33, s33, {L_W1}
    v_add_u32 v41, s33, v41
    """)
    for i in range(9):
        e(f"ds_read_b32 v{64+i}, v41 offset:{i*64*36}")
    for r in range(18):
        e(f"v_mov_b32 v{80+r}, 0")
    for r in range(18):
        e(f"ds_read_u16_d16_hi v{80+r}, v5 offset:{L_W2+r*1152}")
    e(f"""
    s_waitcnt vmcnt(0)
    s_barrier
    s_cmp_lg_u32 s26, 0
    s_cbranch_scc1 K_nocnt2
    s_and_b32 s34, s2, 15
    s_lshl_b32 s34, s34, 8
    s_add_u32 s34, s34, {WS_C2}
    v_mov_b32 v50, 1
    s_mov_b64 exec, 1
    buffer_atomic_add v50, v7, s[20:23], s34 offen
    s_mov_b64 exec, -1
    """)
    stamp(5)
    e(f"""
    v_and_b32 v42, 15, v1
    v_lshlrev_b32 v42, 8, v42
    s_mov_b32 s34, {WS_C2}
    s_mov_b32 s39, 0
    s_mov_b64 exec, 0xffff
    """)
    e.label("K_poll2")
    e(f"""
    buffer_load_dword v41, v42, s[20:23], s34 offen sc0 sc1
    s_waitcnt vmcnt(0)
    v_cmp_le_u32 vcc, 16, v41
    s_add_u32 s39, s39, 1
    s_nop 3
    s_cmp_eq_u64 vcc, exec
    s_cbranch_scc1 K_poll2d
    s_cmp_ge_u32 s39, {POLL_MAX}
    s_cbranch_scc1 K_poll2d
    """)
    sleep()
    e("s_branch K_poll2")
    e.label("K_poll2d")
    e("s_mov_b64 exec, -1")
    e.label("K_nocnt2")
    e("s_barrier")
    stamp(6)
    e(f"s_mov_b32 s33, {WS_ACC1}")
    for r in range(NREP1):
        e(f"buffer_load_dword v{40+r}, v6, s[20:23], s33 offen sc0 sc1")
        if r < NREP1 - 1:
            e("s_add_u32 s33, s33, 2304")
    e("s_waitcnt vmcnt(0)")
    n = NREP1
    while n > 1:
        hh = n // 2
        for r in range(hh):
            e(f"v_add_f32 v{40+r}, v{40+r}, v{40+r+hh}")
        n = hh
    rbf(e, 40, 40)
    e("v_lshlrev_b32 v2, 16, v2")
    e("v_add_f32 v2, v2, v40")
    rbf(e, 2, 2)
    e(f"""
    ds_write_b32 v6, v2 offset:{L_H}
    s_waitcnt lgkmcnt(0)
    s_barrier
    v_lshlrev_b32 v41, 2, v1
    """)
    stamp(7)
    XH = 14
    for i in range(9):
        e(f"ds_read_b32 v{XH+i}, v41 offset:{L_H+i*256}")
    e("s_waitcnt lgkmcnt(0)")
    TT = 23
    e(f"v_add_f32 v{TT}, v{XH}, v{XH+1}")
    for i in range(2, 9):
        e(f"v_add_f32 v{TT}, v{TT}, v{XH+i}")
    wave_reduce_to_sgpr(e, "v_add_f32", TT, 36)
    ln_mean(e, TT, 36)
    e(f"v_sub_f32 v{TT+1}, v{XH}, v{TT}")
    e(f"v_mul_f32 v{TT+2}, v{TT+1}, v{TT+1}")
    for i in range(1, 9):
        e(f"v_sub_f32 v{TT+1}, v{XH+i}, v{TT}")
        e(f"v_fmac_f32 v{TT+2}, v{TT+1}, v{TT+1}")
    wave_reduce_to_sgpr(e, "v_add_f32", TT + 2, 36)
    ln_finish_stats(e, TT, 36)
    for i in range(9):
        ln_apply(e, XH + i, XH + i, TT)
    e("v_mov_b32 v40, 0")
    e("v_mov_b32 v41, 0")
    for i in range(9):
        e(f"v_lshlrev_b32 v42, 16, v{64+i}")
        e(f"v_and_b32 v43, 0xffff0000, v{64+i}")
        e(f"v_fmac_f32 v40, v{XH+i}, v42")
        e(f"v_fmac_f32 v41, v{XH+i}, v43")
    wave_reduce_to_sgpr(e, "v_add_f32", 40, 36)
    wave_reduce_to_sgpr(e, "v_add_f32", 41, 37)
    e(f"""
    v_mov_b32 v40, s36
    v_mov_b32 v41, s37
    v_lshlrev_b32 v42, 16, v4
    v_and_b32 v43, 0xffff0000, v4
    """)
    for c in range(2):
        rbf(e, 40 + c, 40 + c)
        e(f"v_add_f32 v{40+c}, v{40+c}, v{42+c}")
        rbf(e, 40 + c, 40 + c)
        e(f"v_max_f32 v{40+c}, 0, v{40+c}")
        e(f"v_mul_f32 v{40+c}, v{40+c}, v{40+c}")
        rbf(e, 40 + c, 40 + c)
    e(f"""
    s_lshl_b32 s33, s26, 3
    s_add_u32 s33, s33, {L_H1}
    v_mov_b32 v42, s33
    s_mov_b64 exec, 1
    ds_write_b64 v42, v[40:41]
    s_mov_b64 exec, -1
    s_waitcnt lgkmcnt(0)
    s_barrier
    ds_read_b128 v[40:43], v7 offset:{L_H1}
    ds_read_b128 v[44:47], v7 offset:{L_H1+16}
    ds_read_b128 v[48:51], v7 offset:{L_H1+32}
    ds_read_b128 v[52:55], v7 offset:{L_H1+48}
    ds_read_b64 v[56:57], v7 offset:{L_H1+64}
    s_waitcnt lgkmcnt(0)
    v_mul_f32 v58, v40, v80
    """)
    for r in range(1, 18):
        e(f"v_fmac_f32 v58, v{40+r}, v{80+r}")
    e(f"""
    s_and_b32 s33, s2, {NREP2-1}
    s_mul_i32 s33, s33, 2304
    s_add_u32 s33, s33, {WS_ACC2}
    buffer_atomic_add_f32 v58, v6, s[20:23], s33 offen
    """)
    stamp(8)
    e(f"""
    s_waitcnt vmcnt(0)
    s_barrier
    s_cmp_lg_u32 s26, 0
    s_cbranch_scc1 K_nocnt3
    s_and_b32 s34, s2, 15
    s_lshl_b32 s34, s34, 8
    s_add_u32 s34, s34, {WS_C3}
    v_mov_b32 v50, 1
    s_mov_b64 exec, 1
    buffer_atomic_add v50, v7, s[20:23], s34 offen
    s_mov_b64 exec, -1
    """)
    stamp(9)
    e(f"""
    s_cmp_lg_u32 s2, 0
    s_cbranch_scc1 K_fin
    v_and_b32 v42, 15, v1
    v_lshlrev_b32 v42, 8, v42
    s_mov_b32 s34, {WS_C3}
    s_mov_b32 s39, 0
    s_mov_b64 exec, 0xffff
    """)
    e.label("K_poll3")
    e(f"""
    buffer_load_dword v41, v42, s[20:23], s34 offen sc0 sc1
    s_waitcnt vmcnt(0)
    v_cmp_le_u32 vcc, 16, v41
    s_add_u32 s39, s39, 1
    s_nop 3
    s_cmp_eq_u64 vcc, exec
    s_cbranch_scc1 K_poll3d
    s_cmp_lt_u32 s39, {POLL_MAX}
    s_cbranch_scc1 K_poll3
    """)
    e.label("K_poll3d")
    e("s_mov_b64 exec, -1")
    e.label("K_nocnt3")
    e(f"""
    s_cmp_lg_u32 s2, 0
    s_cbranch_scc1 K_end
    s_barrier
    s_mov_b32 s33, {WS_ACC2}
    """)
    for r in range(NREP2):
        e(f"buffer_load_dword v{40+r}, v6, s[20:23], s33 offen sc0 sc1")
        if r < NREP2 - 1:
            e("s_add_u32 s33, s33, 2304")
    e("s_waitcnt vmcnt(0)")
    n = NREP2
    while n > 1:
        hh = n // 2
        for r in range(hh):
            e(f"v_add_f32 v{40+r}, v{40+r}, v{40+r+hh}")
        n = hh
    rbf(e, 40, 40)
    e("v_lshlrev_b32 v3, 16, v3")
    e("v_add_f32 v40, v40, v3")
    rbf(e, 40, 40)
    e("v_add_f32 v40, v40, v2")
    e("v_cvt_pk_bf16_f32 v40, v40, v40")
    e("buffer_store_short v40, v5, s[96:99], 0 offen")
    stamp(10)
    e.label("K_fin")
    if DIAG:
        e(f"""
        s_cmp_lg_u32 s26, 0
        s_cbranch_scc1 K_end
        s_lshl_b32 s33, s2, 8
        s_add_u32 s33, s33, {WS_DIAG}
        v_lshlrev_b32 v41, 2, v1
        buffer_store_dword v39, v41, s[20:23], s33 offen
        """)
    e.label("K_end")
    e("s_endpgm")
    return name


def main():
    ref = open(f"cdna_kernels/{NAME}.s.ref").read().split("\n")
    head = [l for l in ref if l.startswith(";") and "@launch" not in l and "Override launch" not in l and "grid=ceil" not in l]
    out = list(head)
    out.append(f"; @launch kernel=fused_kernel grid=({NWG},1,1) block=({NW*64},1,1) lds={LDS_BYTES}")
    out.append('.amdgcn_target "amdgcn-amd-amdhsa--gfx950"')
    out.append(".text")
    e = E()
    gen(e)
    s = "\n".join(out) + "\n" + e.text()
    s += '.section .rodata,"a"\n.p2align 6\n'
    s += kernel_desc("fused_kernel", NVGA, 102)
    open(OUT, "w").write(s)
    print("wrote", OUT, len(s))


if __name__ == "__main__":
    main()
```

```python
import sys, re, os
sys.path.insert(0, os.path.dirname(os.path.abspath(__file__)))
from gen import (E, srd, rbf, DPP_ROW, row_allreduce, wave_reduce_to_sgpr, div_precise, kernel_header,
                 kernel_desc, ln_wave, ln_mean, ln_finish_stats, ln_apply, NAME, LOG2E, SCALE)

OUT = os.environ.get("OUT", f"cdna_kernels/{NAME}.s")
DIAG = int(os.environ.get("DIAG", "0"))
NREP1 = int(os.environ.get("NREP1", "8"))
NREP2 = int(os.environ.get("NREP2", "8"))
PB = int(os.environ.get("PB", "32"))
NSUB = 4
SLEEP = int(os.environ.get("SLEEP", "1"))
PACE = int(os.environ.get("PACE", "1"))
WPACE = int(os.environ.get("WPACE", "4"))
WDELAY = int(os.environ.get("WDELAY", "0"))
SDELAY = int(os.environ.get("SDELAY", "0"))
FSLEEP = int(os.environ.get("FSLEEP", "3"))
NB = int(os.environ.get("NB", "3"))
POLL_MAX = int(os.environ.get("POLL_MAX", str(0x200000)))
NSTR = 4
NW = 9
HWV = 4
NWW = 4
NT = " nt"
WNT = int(os.environ.get("WNT", "0"))
WN = [" nt" if (WNT >> i) & 1 else "" for i in range(3)]
KMASK = int(os.environ.get("KMASK", "0"))
VMASK = int(os.environ.get("VMASK", "0"))
APOL = os.environ.get("APOL", "").replace("_", " ")
KPOL = os.environ.get("KPOL", "nt").replace("_", " ")
VPOL = os.environ.get("VPOL", "nt").replace("_", " ")
SLOC = 256 - PB
LPB = PB.bit_length() - 1
PTOT = 16 * PB

WS_Q = 0
WS_ML = 65536
WS_CP = 73728
NRA = 16
RST = 5120
WS_ACC1 = WS_CP + 16 * NSUB * 256
WS_ACC2 = WS_ACC1 + NRA * RST
NRH = 16
HST = 3072
WS_HALL = WS_ACC2 + NRA * RST
WS_O = 524288
assert WS_HALL + NRH * HST <= WS_O
PW = 8
WS_DIAG = 1 << 20
WS_SIZE = 0x40000000
OOB = 0x7fff0000

L_WO = 0
L_W2 = 18432
L_W1 = L_W2 + 21504
L_Q = L_W1 + 20736
L_CNT = L_Q + 512
L_FLAG = L_CNT + 16
L_O16 = L_CNT + 64
L_H = 62848
L_HR = 0
L_H1 = L_H + 2304
L_CMB = 65536
L_MB = L_CMB + 16384
LDS_BYTES = L_MB + 1024

NWG = 256
U = 4
NVG = 64 + 32 * NB + 8
assert NB == 3
NVGA = (NVG + 7) // 8 * 8
assert NVGA <= 168


def gen(e):
    name = "fused_kernel"
    kernel_header(e, name)
    Q = 2
    M = 10
    L = 12
    O = 14
    S = 30
    VO = 38
    T = 40
    MX = 56
    AL = 58
    VG = [60, 61, 62, 63]
    KB = [64 + 32 * b for b in range(NB)]
    VB = [80 + 32 * b for b in range(NB)]
    LCA = 64 + 32 * NB
    LRES = LCA + 1
    CUR = [32, 33, 34, 35]
    NXT = [44, 45, 46, 47]

    def stamp(k):
        if not DIAG:
            return
        e(f"""
        s_memrealtime s[8:9]
        s_waitcnt lgkmcnt(0)
        v_writelane_b32 v39, s8, {k}
        """)

    def sleep():
        if SLEEP:
            e(f"s_sleep {SLEEP}")

    e(f"""
    s_cmp_ge_u32 s2, {NWG}
    s_cbranch_scc1 K_end
    s_load_dwordx4 s[40:43], s[0:1], 0
    s_load_dwordx4 s[44:47], s[0:1], 16
    s_load_dwordx2 s[48:49], s[0:1], 32
    s_load_dwordx4 s[52:55], s[0:1], 48
    s_load_dwordx4 s[56:59], s[0:1], 64
    s_load_dwordx4 s[60:63], s[0:1], 80
    s_load_dwordx2 s[64:65], s[0:1], 96
    v_and_b32 v1, 63, v0
    v_lshrrev_b32 v39, 6, v0
    v_lshlrev_b32 v{VO}, 4, v1
    v_readfirstlane_b32 s26, v39
    s_mov_b32 s29, {SCALE}
    s_mov_b32 s30, {LOG2E}
    s_lshr_b32 s24, s2, 4
    s_and_b32 s25, s2, 15
    s_and_b32 s3, s2, 7
    s_lshr_b32 s4, s2, 3
    s_lshl_b32 s28, s3, 5
    s_add_u32 s28, s28, s4
    s_lshl_b32 s27, s2, 20
    s_lshl_b32 s10, s24, 24
    v_mov_b32 v{LCA}, {L_CNT}
    v_mov_b32 v40, {2*NSTR*NB}
    v_mov_b32 v41, 0
    ds_write_b32 v{LCA}, v40
    ds_write_b32 v{LCA}, v41 offset:16
    s_waitcnt lgkmcnt(0)
    s_barrier
    """)
    if DIAG:
        e("v_mov_b32 v39, 0")
    stamp(0)
    srd(e, 12, 42, 0x10000000)
    srd(e, 16, 44, 0x10000000)
    srd(e, 20, 64, WS_SIZE)
    srd(e, 68, 40, 1152)
    srd(e, 72, 46, 576 * 8192)
    srd(e, 76, 48, 4096 * 1152)
    srd(e, 80, 52, 576 * 9216)
    srd(e, 84, 56, 4608 * 1152)
    srd(e, 88, 54, 9216)
    srd(e, 92, 58, 1152)
    srd(e, 96, 60, 1152)
    srd(e, 4, 62, 256)
    e(f"""
    s_mul_i32 s32, s28, 36
    s_lshl_b32 s33, s26, 2
    s_add_u32 s32, s32, s33
    buffer_load_dword v163, off, s[88:91], s32
    s_cmp_lg_u32 s26, {PW}
    s_cbranch_scc1 K_nopx
    v_lshrrev_b32 v162, 4, v1
    v_lshlrev_b32 v162, 3, v162
    s_lshl_b32 s33, s2, 5
    buffer_load_dwordx2 v[164:165], v162, s[68:71], s33 offen
    buffer_load_dwordx2 v[166:167], v162, s[92:95], s33 offen
    """)
    e.label("K_nopx")
    e(f"""
    s_cmp_eq_u32 s26, {HWV}
    s_cbranch_scc1 K_helper
    s_cmp_gt_u32 s26, {HWV}
    s_cbranch_scc1 K_wts
    """)

    def loadK(buf, soff):
        for u in range(U):
            e(f"buffer_load_dwordx4 v[{KB[buf]+4*u}:{KB[buf]+4*u+3}], v{VO}, s[12:15], s{soff} offen offset:{u*1024} {APOL if (KMASK>>u)&1 else KPOL}")

    def loadV(buf, soff):
        for u in range(U):
            e(f"buffer_load_dwordx4 v[{VB[buf]+4*u}:{VB[buf]+4*u+3}], v{VO}, s[16:19], s{soff} offen offset:{u*1024} {APOL if (VMASK>>u)&1 else VPOL}")

    def atom(buf, soff):
        e(f"""
        v_mov_b32 v{VG[buf]}, 1
        s_mov_b64 exec, 1
        buffer_atomic_add v{VG[buf]}, off, s[20:23], s{soff} sc0
        s_mov_b64 exec, -1
        """)

    e(f"""
    s_mul_i32 s3, s24, {NSUB}
    s_add_u32 s11, s26, s3
    s_lshl_b32 s11, s11, 8
    s_add_u32 s11, s11, {WS_CP}
    s_mov_b32 s31, s26
    s_lshl_b32 s36, s26, 12
    s_add_u32 s36, s36, s27
    s_mov_b32 s3, {OOB}
    """)
    for b in range(NB):
        e(f"s_add_u32 s{CUR[b]}, s36, {b*NSTR*4096}")
        e(f"s_add_u32 s{NXT[b]}, s36, {(NB+b)*NSTR*4096}")
    if SDELAY:
        e(f"s_sleep {SDELAY}")
    npw = [0]

    def pacewait():
        k = npw[0]
        npw[0] += 1
        e(f"""
        ds_read_b32 v40, v{LCA} offset:16
        s_waitcnt lgkmcnt(0)
        v_readfirstlane_b32 s36, v40
        s_nop 3
        s_cmp_lg_u32 s36, 0
        s_cbranch_scc1 K_pw{k}
        s_waitcnt vmcnt(0)
        """)
        e.label(f"K_pw{k}")
    for b in range(NB):
        atom(b, 3)
        loadK(b, CUR[b])
        if PACE == 2:
            pacewait()
        loadV(b, CUR[b])
        if PACE and b < NB - 1:
            pacewait()
    e.label("K_wq")
    e(f"""
    ds_read_b32 v40, v{LCA} offset:16
    s_waitcnt lgkmcnt(0)
    v_readfirstlane_b32 s36, v40
    s_nop 3
    s_cmp_lg_u32 s36, 0
    s_cbranch_scc1 K_wqok
    s_sleep 1
    s_branch K_wq
    """)
    e.label("K_wqok")
    stamp(1)
    e(f"""
    v_and_b32 v40, 15, v1
    v_lshlrev_b32 v40, 4, v40
    v_add_u32 v40, {L_Q}, v40
    ds_read_b128 v[{Q}:{Q+3}], v40
    ds_read_b128 v[{Q+4}:{Q+7}], v40 offset:256
    v_mov_b32 v{M}, 0xff800000
    v_mov_b32 v{M+1}, 0xff800000
    v_mov_b32 v{L}, 0
    v_mov_b32 v{L+1}, 0
    s_mov_b32 s66, 0
    """)
    for i in range(16):
        e(f"v_mov_b32 v{O+i}, 0")
    e("s_waitcnt lgkmcnt(0)")

    def scores(buf):
        kb = KB[buf]
        for j in range(4):
            for u in range(U):
                for h in range(2):
                    if j == 0:
                        e(f"v_dot2_f32_bf16 v{S+2*u+h}, v{kb+4*u}, v{Q+4*h}, 0")
                    else:
                        e(f"v_dot2c_f32_bf16 v{S+2*u+h}, v{kb+4*u+j}, v{Q+4*h+j}")

    def softmax_part():
        for c in DPP_ROW:
            for k in range(2 * U):
                e(f"v_add_f32_dpp v{S+k}, v{S+k}, v{S+k} {c} row_mask:0xf bank_mask:0xf")
        for u in range(U):
            e(f"v_cvt_pk_bf16_f32 v{T+u}, v{S+2*u}, v{S+2*u+1}")
        for u in range(U):
            e(f"v_lshlrev_b32 v{S+2*u}, 16, v{T+u}")
            e(f"v_and_b32 v{S+2*u+1}, 0xffff0000, v{T+u}")
        for k in range(2 * U):
            e(f"v_mul_f32 v{S+k}, s29, v{S+k}")
        for u in range(U):
            e(f"v_cvt_pk_bf16_f32 v{T+u}, v{S+2*u}, v{S+2*u+1}")
        for u in range(U):
            e(f"v_lshlrev_b32 v{S+2*u}, 16, v{T+u}")
            e(f"v_and_b32 v{S+2*u+1}, 0xffff0000, v{T+u}")
        for h in range(2):
            e(f"v_max3_f32 v{MX+h}, v{M+h}, v{S+h}, v{S+2+h}")
        for h in range(2):
            e(f"v_max3_f32 v{MX+h}, v{MX+h}, v{S+4+h}, v{S+6+h}")
        for h in range(2):
            e(f"v_sub_f32 v{AL+h}, v{M+h}, v{MX+h}")
        for k in range(2 * U):
            e(f"v_sub_f32 v{S+k}, v{S+k}, v{MX+(k&1)}")
        for h in range(2):
            e(f"v_mul_f32 v{AL+h}, s30, v{AL+h}")
        for k in range(2 * U):
            e(f"v_mul_f32 v{S+k}, s30, v{S+k}")
        for h in range(2):
            e(f"v_exp_f32 v{AL+h}, v{AL+h}")
        for k in range(2 * U):
            e(f"v_exp_f32 v{S+k}, v{S+k}")
        for h in range(2):
            e(f"v_mov_b32 v{M+h}, v{MX+h}")
        for h in range(2):
            e(f"v_mul_f32 v{L+h}, v{L+h}, v{AL+h}")
        for h in range(2):
            for i in range(8):
                e(f"v_mul_f32 v{O+8*h+i}, v{O+8*h+i}, v{AL+h}")
        for u in range(U):
            for h in range(2):
                e(f"v_add_f32 v{L+h}, v{L+h}, v{S+2*u+h}")

    def pv(buf):
        vb = VB[buf]
        for u in range(U):
            t = T + 8 * (u & 1)
            for j in range(4):
                e(f"v_lshlrev_b32 v{t+2*j}, 16, v{vb+4*u+j}")
                e(f"v_and_b32 v{t+2*j+1}, 0xffff0000, v{vb+4*u+j}")
            for h in range(2):
                for i in range(8):
                    e(f"v_fmac_f32 v{O+8*h+i}, v{S+2*u+h}, v{t+i}")

    e.label("K_loop")
    for buf in range(NB):
        cur = CUR[buf]
        nxt = NXT[buf]
        e(f"""
        s_cmp_eq_u32 s{cur}, {OOB}
        s_cbranch_scc1 K_done
        v_mov_b32 v{LRES}, 1
        s_mov_b64 exec, 1
        ds_add_rtn_u32 v{LRES}, v{LCA}, v{LRES}
        s_mov_b64 exec, -1
        s_waitcnt vmcnt({9*NB-5})
        v_readfirstlane_b32 s36, v{VG[buf]}
        """)
        scores(buf)
        e(f"""
        s_mul_i32 s36, s36, {NSUB}
        s_add_u32 s36, s36, s31
        s_lshr_b32 s37, s36, {LPB}
        s_lshl_b32 s37, s37, 20
        s_and_b32 s38, s36, {PB-1}
        s_add_u32 s38, s38, {SLOC}
        s_lshl_b32 s38, s38, 12
        s_add_u32 s37, s37, s38
        s_add_u32 s37, s37, s10
        s_cmp_lt_u32 s36, {PTOT}
        s_cselect_b32 s37, s37, {OOB}
        s_cmp_eq_u32 s{nxt}, -1
        s_cselect_b32 s{cur}, s37, s{nxt}
        s_waitcnt lgkmcnt(0)
        v_readfirstlane_b32 s36, v{LRES}
        s_nop 3
        s_lshl_b32 s37, s36, 12
        s_add_u32 s37, s37, s27
        s_cmp_lt_u32 s36, {SLOC}
        s_cselect_b32 s{nxt}, s37, -1
        s_cselect_b32 s3, {OOB}, s11
        """)
        if DIAG:
            e("s_add_u32 s66, s66, 1")
        atom(buf, 3)
        loadK(buf, cur)
        softmax_part()
        e(f"s_waitcnt vmcnt({9*NB-4})")
        pv(buf)
        loadV(buf, cur)
    e("s_branch K_loop")
    e.label("K_done")
    stamp(2)
    if DIAG:
        e(f"""
        v_mov_b32 v40, s8
        v_mov_b32 v41, s66
        s_lshl_b32 s33, s2, 7
        s_lshl_b32 s34, s26, 3
        s_add_u32 s33, s33, s34
        s_add_u32 s33, s33, {WS_DIAG + 65536}
        s_mov_b64 exec, 1
        buffer_store_dwordx2 v[40:41], off, s[20:23], s33
        s_mov_b64 exec, -1
        """)
    e(f"""
    v_lshrrev_b32 v40, 4, v0
    v_and_b32 v41, 15, v1
    v_lshlrev_b32 v42, 10, v40
    v_lshl_add_u32 v42, v41, 5, v42
    v_add_u32 v42, {L_CMB}, v42
    ds_write_b128 v42, v[{O}:{O+3}]
    ds_write_b128 v42, v[{O+4}:{O+7}] offset:16
    ds_write_b128 v42, v[{O+8}:{O+11}] offset:512
    ds_write_b128 v42, v[{O+12}:{O+15}] offset:528
    v_lshlrev_b32 v43, 2, v40
    v_add_u32 v43, {L_MB}, v43
    ds_write_b32 v43, v{M}
    ds_write_b32 v43, v{M+1} offset:256
    ds_write_b32 v43, v{L} offset:512
    ds_write_b32 v43, v{L+1} offset:768
    s_branch K_tail
    """)

    e.label("K_wts")
    e(f"""
    s_sub_u32 s31, s26, {HWV+1}
    s_cmp_lg_u32 s25, 0
    s_cbranch_scc1 K_noinit
    s_cmp_lg_u32 s31, 0
    s_cbranch_scc1 K_noinit
    v_mov_b32 v40, -1
    v_mov_b32 v41, -1
    v_mov_b32 v42, -1
    v_mov_b32 v43, -1
    v_mov_b32 v44, 0
    v_mov_b32 v45, 0
    v_mov_b32 v46, 0
    v_mov_b32 v47, 0
    s_lshl_b32 s32, s24, 12
    s_mul_i32 s33, s24, {NSUB*256}
    s_add_u32 s33, s33, {WS_CP}
    buffer_load_dword v48, off, s[4:7], 0 offset:192
    """)
    for i in range(4):
        e(f"buffer_store_dwordx4 v[40:43], v{VO}, s[20:23], s32 offen offset:{WS_Q+i*1024} sc0 sc1")
    e(f"buffer_store_dwordx4 v[44:47], v{VO}, s[20:23], s33 offen sc0 sc1")
    e(f"""
    s_mul_i32 s33, s24, {RST}
    s_add_u32 s33, s33, {WS_ACC1}
    s_add_u32 s35, s33, {NRA*RST}
    s_mul_i32 s34, s24, {HST}
    s_add_u32 s34, s34, {WS_HALL}
    s_lshl_b32 s32, s24, 2
    v_mov_b32 v49, 1
    s_waitcnt vmcnt(0)
    s_mov_b64 exec, 1
    buffer_store_dword v49, off, s[4:7], s32 sc0 sc1
    s_mov_b64 exec, -1
    """)
    for sr in (33, 35):
        for i in range(4):
            e(f"buffer_store_dwordx4 v[44:47], v{VO}, s[20:23], s{sr} offen offset:{i*1024} sc0 sc1")
        e(f"s_add_u32 s{sr}, s{sr}, 4096")
        e(f"buffer_store_dwordx4 v[44:47], v{VO}, s[20:23], s{sr} offen sc0 sc1")
    for i in range(HST // 1024):
        e(f"buffer_store_dwordx4 v[40:43], v{VO}, s[20:23], s34 offen offset:{i*1024} sc0 sc1")
    e(f"""
    s_waitcnt vmcnt(0)
    s_mov_b64 exec, 1
    buffer_store_dword v49, off, s[4:7], s32 offset:128 sc0 sc1
    s_mov_b64 exec, -1
    """)
    e.label("K_noinit")
    if WDELAY:
        e(f"s_sleep {WDELAY}")
    cnt = [0]

    def wpace(n):
        cnt[0] += n
        if WPACE and cnt[0] >= WPACE * 4:
            e("s_waitcnt vmcnt(0)")
            cnt[0] = 0

    def wtasks(lbl, ntask, srdn, base_code, ldsbase):
        e(base_code)
        e(f"""
        s_lshl_b32 s37, s31, 10
        s_add_u32 s36, s36, s37
        s_add_u32 s38, s37, {ldsbase}
        """)
        k = 0
        while k * NWW < ntask:
            if (k + 1) * NWW > ntask:
                e(f"s_cmp_ge_u32 s31, {ntask - k*NWW}")
                e(f"s_cbranch_scc1 {lbl}")
            e(f"""
            s_mov_b32 m0, s38
            s_nop 0
            buffer_load_dwordx4 v{VO}, s[{srdn}:{srdn+3}], s36 offen{WN[1]} lds
            s_add_u32 s36, s36, {NWW*1024}
            s_add_u32 s38, s38, {NWW*1024}
            """)
            wpace(4)
            k += 1
        e.label(lbl)
    wtasks("K_wo_done", 18, 76, f"""
    s_lshl_b32 s36, s24, 4
    s_add_u32 s36, s36, s25
    s_mul_i32 s36, s36, {16*1152}
    """, L_WO)
    wtasks("K_w2_done", 21, 84, "s_mul_i32 s36, s28, 20736", L_W2)
    e(f"""
    s_mul_i32 s36, s28, 36
    s_lshl_b32 s37, s31, 8
    s_add_u32 s38, s37, {L_W1}
    s_movk_i32 s39, 9216
    v_subrev_u32 v30, {(HWV+1)*64}, v0
    """)
    k = 0
    while k * NWW < 81:
        if (k + 1) * NWW > 81:
            e(f"s_cmp_ge_u32 s31, {81 - k*NWW}")
            e("s_cbranch_scc1 K_w1_done")
        e(f"""
        v_add_u32 v31, {k*NWW*64}, v30
        v_mul_u32_u24 v32, 7282, v31
        v_lshrrev_b32 v32, 16, v32
        v_mul_u32_u24 v33, 9, v32
        v_sub_u32 v33, v31, v33
        v_mul_u32_u24 v32, s39, v32
        v_lshl_add_u32 v32, v33, 2, v32
        s_mov_b32 m0, s38
        s_add_u32 s38, s38, {NWW*256}
        buffer_load_dword v32, s[80:83], s36 offen{WN[2]} lds
        """)
        wpace(2)
        k += 1
    e.label("K_w1_done")
    e("s_branch K_tail")

    e.label("K_helper")
    X = 14
    WR = 64
    LNV = 40
    e("v_lshlrev_b32 v40, 1, v1")
    for i in range(9):
        e(f"buffer_load_ushort v{X+i}, v40, s[68:71], 0 offen offset:{i*128}")
    e(f"""
    v_lshrrev_b32 v41, 3, v1
    v_mul_u32_u24 v40, {18*8192}, v41
    v_and_b32 v42, 7, v1
    v_lshl_add_u32 v40, v42, 4, v40
    s_lshr_b32 s33, s25, 2
    s_and_b32 s34, s25, 3
    s_mul_i32 s32, s33, {144*8192}
    s_lshl_b32 s35, s24, 9
    s_add_u32 s32, s32, s35
    s_lshl_b32 s35, s34, 7
    s_add_u32 s32, s32, s35
    """)
    for i in range(18):
        e(f"buffer_load_dwordx4 v[{WR+4*i}:{WR+4*i+3}], v40, s[72:75], s32 offen{WN[0]}")
        if i < 17:
            e("s_add_u32 s32, s32, 0x2000")
    e(f"""
    v_mul_u32_u24 v34, 72, v41
    s_mul_i32 s35, s33, 576
    s_add_u32 s35, s35, {L_H}
    v_add_u32 v34, s35, v34
    """)
    e(f"""
    v_mov_b32 v40, -1
    v_mov_b32 v41, -1
    v_lshrrev_b32 v42, 4, v1
    v_lshlrev_b32 v42, 10, v42
    v_and_b32 v43, 15, v1
    v_lshl_add_u32 v42, v43, 2, v42
    s_lshl_b32 s36, s24, 14
    s_lshl_b32 s37, s25, 6
    s_add_u32 s36, s36, s37
    s_add_u32 s36, s36, {WS_O}
    buffer_store_dword v40, v42, s[20:23], s36 offen sc0 sc1
    s_add_u32 s36, s36, 4096
    buffer_store_dword v40, v42, s[20:23], s36 offen sc0 sc1
    s_add_u32 s36, s36, 4096
    buffer_store_dword v40, v42, s[20:23], s36 offen sc0 sc1
    s_add_u32 s36, s36, 4096
    buffer_store_dword v40, v42, s[20:23], s36 offen sc0 sc1
    s_lshl_b32 s36, s24, 8
    s_lshl_b32 s37, s25, 3
    s_add_u32 s36, s36, s37
    s_add_u32 s36, s36, {WS_ML}
    s_mov_b64 exec, 1
    buffer_store_dwordx2 v[40:41], off, s[20:23], s36 sc0 sc1
    buffer_store_dwordx2 v[40:41], off, s[20:23], s36 offset:128 sc0 sc1
    s_mov_b64 exec, -1
    s_lshl_b32 s66, s24, 2
    buffer_load_dword v37, off, s[4:7], 0 offset:192
    s_waitcnt vmcnt(25)
    """)
    stamp(1)
    ln_wave(e, X=X, LN=X, T=23, S=36)
    e("v_lshlrev_b32 v40, 2, v1")
    for i in range(9):
        e(f"ds_write_b32 v40, v{X+i} offset:{L_H+i*256}")
    e("s_waitcnt lgkmcnt(0)")
    for i in range(9):
        e(f"ds_read_b64 v[{LNV+2*i}:{LNV+2*i+1}], v34 offset:{i*8}")
    ACC = list(range(2, 10))
    for c in range(8):
        e(f"v_mov_b32 v{ACC[c]}, 0")
    e("s_waitcnt vmcnt(0) lgkmcnt(0)")
    stamp(2)
    e("buffer_load_dword v36, off, s[4:7], s66 sc0 sc1")
    for i in range(18):
        for j in range(4):
            w = WR + 4 * i + j
            e(f"v_lshlrev_b32 v{10+(j&1)*2}, 16, v{w}")
            e(f"v_and_b32 v{11+(j&1)*2}, 0xffff0000, v{w}")
            e(f"v_fmac_f32 v{ACC[2*j]}, v{LNV+i}, v{10+(j&1)*2}")
            e(f"v_fmac_f32 v{ACC[2*j+1]}, v{LNV+i}, v{11+(j&1)*2}")
    e("s_nop 1")
    for c in range(4):
        e(f"v_permlane32_swap_b32 v{ACC[c]}, v{ACC[c+4]}")
    e("s_nop 1")
    for c in range(4):
        e(f"v_add_f32 v{ACC[c]}, v{ACC[c]}, v{ACC[c+4]}")
    e("s_nop 1")
    for c in range(2):
        e(f"v_permlane16_swap_b32 v{ACC[c]}, v{ACC[c+2]}")
    e("s_nop 1")
    for c in range(2):
        e(f"v_add_f32 v{ACC[c]}, v{ACC[c]}, v{ACC[c+2]}")
    e("s_nop 1")
    for c in range(2):
        e(f"v_add_f32_dpp v{ACC[c]}, v{ACC[c]}, v{ACC[c]} row_ror:8 row_mask:0xf bank_mask:0xf")
    e(f"""
    v_and_b32 v40, 7, v1
    v_lshlrev_b32 v40, 5, v40
    v_lshrrev_b32 v41, 4, v1
    v_lshl_add_u32 v40, v41, 3, v40
    v_and_b32 v43, 8, v1
    s_lshl_b32 s32, s24, 12
    s_lshl_b32 s35, s33, 10
    s_add_u32 s35, s35, s32
    s_lshl_b32 s34, s34, 8
    s_add_u32 s35, s35, s34
    s_mov_b32 s39, 0
    """)
    e.label("K_flagchk")
    e(f"""
    s_waitcnt vmcnt(0)
    v_readfirstlane_b32 s36, v36
    s_add_u32 s39, s39, 1
    s_nop 3
    s_cmp_lg_u32 s36, 0
    s_cbranch_scc1 K_flagok
    s_cmp_ge_u32 s39, {POLL_MAX}
    s_cbranch_scc1 K_flagok
    s_sleep {FSLEEP}
    buffer_load_dword v36, off, s[4:7], s66 sc0 sc1
    s_branch K_flagchk
    """)
    e.label("K_flagok")
    e(f"""
    v_cmp_eq_u32 vcc, 0, v43
    s_and_saveexec_b64 s[36:37], vcc
    buffer_store_dwordx2 v[{ACC[0]}:{ACC[1]}], v40, s[20:23], s35 offen offset:{WS_Q} sc0 sc1
    s_mov_b64 exec, -1
    s_mov_b32 s39, 0
    """)
    stamp(3)
    e.label("K_qpoll")
    for r in range(4):
        e(f"buffer_load_dwordx4 v[{44+4*r}:{47+4*r}], v{VO}, s[20:23], s32 offen offset:{WS_Q+r*1024} sc0 sc1")
    e("s_waitcnt vmcnt(0)")
    e("v_max3_u32 v60, v44, v45, v46")
    for r in range(47, 59, 2):
        e(f"v_max3_u32 v60, v60, v{r}, v{r+1}")
    e(f"""
    v_max_u32 v60, v60, v59
    v_cmp_ne_u32 vcc, -1, v60
    s_add_u32 s39, s39, 1
    s_nop 3
    s_cmp_eq_u64 vcc, exec
    s_cbranch_scc1 K_qok
    s_cmp_ge_u32 s39, {POLL_MAX}
    s_cbranch_scc1 K_qok
    """)
    sleep()
    e("s_branch K_qpoll")
    e.label("K_qok")
    for c in range(4):
        e(f"v_add_f32 v{44+c}, v{44+c}, v{48+c}")
        e(f"v_add_f32 v{52+c}, v{52+c}, v{56+c}")
    for c in range(4):
        e(f"v_add_f32 v{44+c}, v{44+c}, v{52+c}")
    e(f"""
    v_cvt_pk_bf16_f32 v40, v44, v45
    v_cvt_pk_bf16_f32 v41, v46, v47
    v_lshlrev_b32 v42, 3, v1
    v_mov_b32 v43, 1
    ds_write_b64 v42, v[40:41] offset:{L_Q}
    s_waitcnt lgkmcnt(0)
    ds_write_b32 v{LCA}, v43 offset:16
    v_lshlrev_b32 v42, 2, v1
    s_mov_b32 s39, 0
    """)
    stamp(4)
    e("s_mov_b64 exec, 0xffff")
    e("s_sleep 100")
    e.label("K_fbpoll")
    e(f"""
    buffer_load_dword v44, v42, s[4:7], 0 offen offset:128 sc0 sc1
    s_waitcnt vmcnt(0)
    v_cmp_ne_u32 vcc, 0, v44
    s_add_u32 s39, s39, 1
    s_nop 3
    s_cmp_eq_u64 vcc, exec
    s_cbranch_scc1 K_fbok
    s_cmp_ge_u32 s39, {POLL_MAX}
    s_cbranch_scc1 K_fbok
    s_sleep 32
    s_branch K_fbpoll
    """)
    e.label("K_fbok")
    e("s_mov_b64 exec, -1")
    stamp(5)
    if DIAG:
        e(f"""
        s_lshl_b32 s36, s2, 8
        s_add_u32 s36, s36, {WS_DIAG + 131072}
        v_lshlrev_b32 v41, 2, v1
        buffer_store_dword v39, v41, s[20:23], s36 offen
        """)

    e.label("K_tail")
    e(f"""
    v_lshlrev_b32 v5, 1, v0
    v_lshlrev_b32 v6, 2, v0
    v_mov_b32 v7, 0
    v_and_b32 v13, 15, v1
    v_mul_u32_u24 v104, {HST}, v13
    v_mul_u32_u24 v13, {RST}, v13
    v_lshrrev_b32 v105, 4, v1
    v_lshl_add_u32 v13, v105, 5, v13
    v_lshlrev_b32 v105, 4, v105
    v_add_u32 v104, v104, v105
    s_waitcnt vmcnt(0) lgkmcnt(0)
    s_barrier
    """)
    stamp(3 if True else 0)
    e(f"""
    s_cmp_ge_u32 s26, 4
    s_cbranch_scc1 K_nocomb
    s_lshr_b32 s31, s26, 1
    s_and_b32 s32, s26, 1
    s_lshl_b32 s33, s31, 8
    v_lshlrev_b32 v43, 2, v1
    v_add_u32 v43, s33, v43
    v_add_u32 v43, {L_MB}, v43
    ds_read_b32 v44, v43
    ds_read_b32 v45, v43 offset:512
    s_lshl_b32 s33, s31, 9
    s_lshl_b32 s34, s32, 8
    s_add_u32 s33, s33, s34
    s_add_u32 s33, s33, {L_CMB}
    v_lshlrev_b32 v46, 2, v1
    v_add_u32 v46, s33, v46
    """)
    NG = 4 * NSTR
    for g in range(NG):
        e(f"ds_read_b32 v{64+g}, v46 offset:{g*1024}")
    e("s_waitcnt lgkmcnt(0)")
    e(f"""
    v_cmp_gt_u32 vcc, {NG}, v1
    v_mov_b32 v47, 0xff800000
    v_cndmask_b32 v44, v47, v44, vcc
    v_cndmask_b32 v45, 0, v45, vcc
    v_mov_b32 v47, v44
    """)
    wave_reduce_to_sgpr(e, "v_max_f32", 47, 36)
    e(f"""
    v_subrev_f32 v47, s36, v44
    v_mul_f32 v47, s30, v47
    v_exp_f32 v47, v47
    s_nop 0
    v_mul_f32 v48, v47, v45
    """)
    wave_reduce_to_sgpr(e, "v_add_f32", 48, 37)
    e("v_mov_b32 v49, 0")
    for g in range(NG):
        e(f"v_readlane_b32 s{40+(g&3)}, v47, {g}")
        if (g & 3) == 3:
            e("s_nop 1")
            for k in range(4):
                e(f"v_fmac_f32 v49, s{40+k}, v{64+g-3+k}")
    e(f"""
    s_lshl_b32 s33, s24, 1
    s_add_u32 s33, s33, s31
    s_lshl_b32 s34, s33, 13
    s_lshl_b32 s35, s32, 12
    s_add_u32 s34, s34, s35
    s_lshl_b32 s35, s25, 6
    s_add_u32 s34, s34, s35
    s_add_u32 s34, s34, {WS_O}
    v_lshrrev_b32 v46, 4, v1
    v_lshlrev_b32 v46, 10, v46
    v_and_b32 v50, 15, v1
    v_lshl_add_u32 v46, v50, 2, v46
    buffer_store_dword v49, v46, s[20:23], s34 offen sc0 sc1
    s_cmp_lg_u32 s32, 0
    s_cbranch_scc1 K_nocomb
    s_lshl_b32 s34, s33, 4
    s_add_u32 s34, s34, s25
    s_lshl_b32 s34, s34, 3
    s_add_u32 s34, s34, {WS_ML}
    v_mov_b32 v50, s36
    v_mov_b32 v51, s37
    s_mov_b64 exec, 1
    buffer_store_dwordx2 v[50:51], v7, s[20:23], s34 offen sc0 sc1
    s_mov_b64 exec, -1
    """)
    e.label("K_nocomb")
    for r in range(16):
        e(f"v_mov_b32 v{64+r}, 0")
    for r in range(16):
        e(f"ds_read_u16_d16_hi v{64+r}, v5 offset:{L_WO+r*1152}")
    e(f"""
    s_cmp_lg_u32 s26, 4
    s_cbranch_scc1 K_noo16
    s_lshl_b32 s33, s24, 1
    s_lshr_b32 s34, s25, 3
    s_add_u32 s33, s33, s34
    s_lshl_b32 s32, s33, 7
    s_add_u32 s32, s32, {WS_ML}
    v_lshrrev_b32 v40, 2, v1
    v_lshlrev_b32 v40, 3, v40
    s_lshl_b32 s33, s33, 3
    s_and_b32 s34, s25, 7
    s_add_u32 s33, s33, s34
    s_lshl_b32 s33, s33, 10
    s_add_u32 s33, s33, {WS_O}
    s_mov_b32 s39, 0
    """)
    e.label("K_poll1")
    e(f"""
    buffer_load_dwordx2 v[44:45], v40, s[20:23], s32 offen sc0 sc1
    buffer_load_dwordx4 v[48:51], v{VO}, s[20:23], s33 offen sc0 sc1
    s_waitcnt vmcnt(0)
    v_max3_u32 v52, v44, v45, v48
    v_max3_u32 v52, v52, v49, v50
    v_max_u32 v52, v52, v51
    v_cmp_ne_u32 vcc, -1, v52
    s_add_u32 s39, s39, 1
    s_nop 3
    s_cmp_eq_u64 vcc, exec
    s_cbranch_scc1 K_poll1d
    s_cmp_ge_u32 s39, {POLL_MAX}
    s_cbranch_scc1 K_poll1d
    """)
    sleep()
    e("s_branch K_poll1")
    e.label("K_poll1d")
    e("v_mov_b32 v47, v44")
    wave_reduce_to_sgpr(e, "v_max_f32", 47, 36)
    e(f"""
    v_subrev_f32 v47, s36, v44
    v_mul_f32 v47, s30, v47
    v_exp_f32 v47, v47
    s_nop 0
    v_mul_f32 v52, v47, v45
    v_mul_f32 v52, 0.25, v52
    """)
    wave_reduce_to_sgpr(e, "v_add_f32", 52, 37)
    for c in range(4):
        e(f"v_mul_f32 v{48+c}, v{48+c}, v47")
    for d in ["row_ror:4", "row_ror:8"]:
        e("s_nop 1")
        for c in range(4):
            e(f"v_add_f32_dpp v{48+c}, v{48+c}, v{48+c} {d} row_mask:0xf bank_mask:0xf")
    for sw in ["v_permlane16_swap_b32", "v_permlane32_swap_b32"]:
        for c in range(4):
            e(f"v_mov_b32 v{52+c}, v{48+c}")
        e("s_nop 1")
        for c in range(4):
            e(f"{sw} v{48+c}, v{52+c}")
        e("s_nop 1")
        for c in range(4):
            e(f"v_add_f32 v{48+c}, v{48+c}, v{52+c}")
    e("v_mov_b32 v56, s37")
    for c in range(4):
        div_precise(e, 52 + c, 48 + c, 56, 57, 58)
        rbf(e, 52 + c, 52 + c)
    e(f"""
    v_add_u32 v40, {L_O16}, v{VO}
    s_mov_b64 exec, 15
    ds_write_b128 v40, v[52:55]
    s_mov_b64 exec, -1
    """)
    e.label("K_noo16")
    e(f"""
    s_waitcnt lgkmcnt(0)
    s_barrier
    ds_read_b128 v[40:43], v7 offset:{L_O16}
    ds_read_b128 v[44:47], v7 offset:{L_O16+16}
    ds_read_b128 v[48:51], v7 offset:{L_O16+32}
    ds_read_b128 v[52:55], v7 offset:{L_O16+48}
    s_waitcnt lgkmcnt(0)
    v_mul_f32 v58, v40, v64
    """)
    for r in range(1, 16):
        e(f"v_fmac_f32 v58, v{40+r}, v{64+r}")

    def tofix(v, lo, hi, t):
        e(f"""
        v_mul_f32 v{t}, 0x43800000, v{v}
        v_floor_f32 v{hi}, v{t}
        v_sub_f32 v{t}, v{t}, v{hi}
        v_cvt_i32_f32 v{hi}, v{hi}
        v_mul_f32 v{t}, 0x4f800000, v{t}
        v_cvt_u32_f32 v{lo}, v{t}
        v_and_b32 v{lo}, 0xfffffe00, v{lo}
        v_or_b32 v{lo}, 1, v{lo}
        """)

    def colpoll(lbl, base):
        e(f"""
        s_lshl_b32 s33, s2, 7
        s_add_u32 s33, s33, {base}
        s_mov_b32 s39, 0
        """)
        e.label(lbl)
        e(f"""
        buffer_load_dwordx4 v[44:47], v13, s[20:23], s33 offen sc0 sc1
        buffer_load_dwordx4 v[48:51], v13, s[20:23], s33 offen offset:16 sc0 sc1
        s_waitcnt vmcnt(0)
        v_and_b32 v52, v44, v46
        v_and_b32 v53, v48, v50
        v_or_b32 v54, v44, v46
        v_or3_b32 v54, v54, v48, v50
        v_and_b32 v52, v52, v53
        v_and_b32 v52, 0x1ff, v52
        v_and_b32 v54, 0x1ff, v54
        v_lshl_or_b32 v52, v54, 16, v52
        v_cmp_eq_u32 vcc, {(NWG//NRA) * 0x10001}, v52
        s_add_u32 s39, s39, 1
        s_nop 3
        s_cmp_eq_u64 vcc, exec
        s_cbranch_scc1 {lbl}d
        s_cmp_lt_u32 s39, {POLL_MAX}
        s_cbranch_scc1 {lbl}
        """)
        e.label(lbl + "d")
        e("v_mov_b32 v56, 0x2b800000")
        for c in range(4):
            e(f"""
            v_and_b32 v{44+2*c}, 0xfffffe00, v{44+2*c}
            v_cvt_f32_i32 v{45+2*c}, v{45+2*c}
            v_cvt_f32_u32 v{44+2*c}, v{44+2*c}
            v_mul_f32 v{45+2*c}, 0x3b800000, v{45+2*c}
            """)
        for c in range(4):
            e(f"v_fma_f32 v{52+c}, v{44+2*c}, v56, v{45+2*c}")
        for d in DPP_ROW:
            e("s_nop 0")
            for c in range(4):
                e(f"v_add_f32_dpp v{52+c}, v{52+c}, v{52+c} {d} row_mask:0xf bank_mask:0xf")
        for c in range(4):
            rbf(e, 44 + c, 52 + c)

    tofix(58, 8, 9, 59)
    e(f"""
    v_lshlrev_b32 v12, 3, v0
    s_and_b32 s35, s2, {NRA-1}
    s_mul_i32 s35, s35, {RST}
    s_add_u32 s33, s35, {WS_ACC1}
    buffer_atomic_add_x2 v[8:9], v12, s[20:23], s33 offen
    """)
    stamp(4)
    e(f"""
    v_mul_u32_u24 v41, 36, v1
    s_lshl_b32 s33, s26, 2
    s_add_u32 s33, s33, {L_W1}
    v_add_u32 v41, s33, v41
    """)
    for i in range(9):
        e(f"ds_read_b32 v{64+i}, v41 offset:{i*64*36}")
    for r in range(18):
        e(f"v_mov_b32 v{80+r}, 0")
    for r in range(18):
        e(f"ds_read_u16_d16_hi v{80+r}, v5 offset:{L_W2+r*1152}")
    e(f"""
    s_cmp_lg_u32 s26, {PW}
    s_cbranch_scc1 K_nopub
    s_cmp_ge_u32 s2, 36
    s_cbranch_scc1 K_nopub
    """)
    colpoll("K_cp1", WS_ACC1)
    e(f"""
    v_lshlrev_b32 v48, 16, v164
    v_and_b32 v49, 0xffff0000, v164
    v_lshlrev_b32 v50, 16, v165
    v_and_b32 v51, 0xffff0000, v165
    """)
    for c in range(4):
        e(f"v_add_f32 v{44+c}, v{44+c}, v{48+c}")
        rbf(e, 44 + c, 44 + c)
    e(f"""
    s_lshl_b32 s33, s2, 6
    s_add_u32 s33, s33, {WS_HALL}
    buffer_store_dwordx4 v[44:47], v104, s[20:23], s33 offen sc0 sc1
    """)
    e.label("K_nopub")
    stamp(5)
    XH = 14
    e(f"""
    s_cmp_lg_u32 s26, 4
    s_cbranch_scc1 K_noln
    s_and_b32 s33, s2, {NRH-1}
    s_mul_i32 s33, s33, {HST}
    s_add_u32 s33, s33, {WS_HALL}
    v_lshlrev_b32 v41, 2, v1
    s_mov_b32 s39, 0
    """)
    e.label("K_poll2")
    e(f"""
    buffer_load_dwordx4 v[{XH}:{XH+3}], v{VO}, s[20:23], s33 offen sc0 sc1
    buffer_load_dwordx4 v[{XH+4}:{XH+7}], v{VO}, s[20:23], s33 offen offset:1024 sc0 sc1
    buffer_load_dword v{XH+8}, v41, s[20:23], s33 offen offset:2048 sc0 sc1
    s_waitcnt vmcnt(0)
    v_max3_u32 v52, v{XH}, v{XH+1}, v{XH+2}
    v_max3_u32 v52, v52, v{XH+3}, v{XH+4}
    v_max3_u32 v52, v52, v{XH+5}, v{XH+6}
    v_max3_u32 v52, v52, v{XH+7}, v{XH+8}
    v_cmp_ne_u32 vcc, -1, v52
    s_add_u32 s39, s39, 1
    s_nop 3
    s_cmp_eq_u64 vcc, exec
    s_cbranch_scc1 K_poll2d
    s_cmp_ge_u32 s39, {POLL_MAX}
    s_cbranch_scc1 K_poll2d
    """)
    sleep()
    e("s_branch K_poll2")
    e.label("K_poll2d")
    e(f"""
    ds_write_b128 v{VO}, v[{XH}:{XH+3}] offset:{L_HR}
    ds_write_b128 v{VO}, v[{XH+4}:{XH+7}] offset:{L_HR+1024}
    ds_write_b32 v41, v{XH+8} offset:{L_HR+2048}
    """)
    TT = 23
    e(f"v_add_f32 v{TT}, v{XH}, v{XH+1}")
    for i in range(2, 9):
        e(f"v_add_f32 v{TT}, v{TT}, v{XH+i}")
    wave_reduce_to_sgpr(e, "v_add_f32", TT, 36)
    ln_mean(e, TT, 36)
    e(f"v_sub_f32 v{TT+1}, v{XH}, v{TT}")
    e(f"v_mul_f32 v{TT+2}, v{TT+1}, v{TT+1}")
    for i in range(1, 9):
        e(f"v_sub_f32 v{TT+1}, v{XH+i}, v{TT}")
        e(f"v_fmac_f32 v{TT+2}, v{TT+1}, v{TT+1}")
    wave_reduce_to_sgpr(e, "v_add_f32", TT + 2, 36)
    ln_finish_stats(e, TT, 36)
    for i in range(9):
        ln_apply(e, XH + i, XH + i, TT)
    e(f"""
    ds_write_b128 v{VO}, v[{XH}:{XH+3}] offset:{L_H}
    ds_write_b128 v{VO}, v[{XH+4}:{XH+7}] offset:{L_H+1024}
    ds_write_b32 v41, v{XH+8} offset:{L_H+2048}
    """)
    e.label("K_noln")
    e(f"""
    v_lshlrev_b32 v41, 2, v1
    s_waitcnt lgkmcnt(0)
    s_barrier
    """)
    stamp(6)
    for i in range(9):
        e(f"ds_read_b32 v{XH+i}, v41 offset:{L_H+i*256}")
    e("s_waitcnt lgkmcnt(0)")
    for i in range(9):
        e(f"v_lshlrev_b32 v42, 16, v{64+i}")
        e(f"v_and_b32 v43, 0xffff0000, v{64+i}")
        if i == 0:
            e(f"v_mul_f32 v40, v{XH+i}, v42")
            e(f"v_mul_f32 v41, v{XH+i}, v43")
        else:
            e(f"v_fmac_f32 v40, v{XH+i}, v42")
            e(f"v_fmac_f32 v41, v{XH+i}, v43")
    for c in DPP_ROW:
        e("s_nop 0")
        for k in range(2):
            e(f"v_add_f32_dpp v{40+k}, v{40+k}, v{40+k} {c} row_mask:0xf bank_mask:0xf")
    e("s_nop 0")
    for k in range(2):
        e(f"v_add_f32_dpp v{40+k}, v{40+k}, v{40+k} row_bcast:15 row_mask:0xa bank_mask:0xf")
    e("s_nop 0")
    for k in range(2):
        e(f"v_add_f32_dpp v{40+k}, v{40+k}, v{40+k} row_bcast:31 row_mask:0xc bank_mask:0xf")
    e(f"""
    v_lshlrev_b32 v42, 16, v163
    v_and_b32 v43, 0xffff0000, v163
    """)
    for c in range(2):
        rbf(e, 40 + c, 40 + c)
        e(f"v_add_f32 v{40+c}, v{40+c}, v{42+c}")
        rbf(e, 40 + c, 40 + c)
        e(f"v_max_f32 v{40+c}, 0, v{40+c}")
        e(f"v_mul_f32 v{40+c}, v{40+c}, v{40+c}")
        rbf(e, 40 + c, 40 + c)
    e(f"""
    s_lshl_b32 s33, s26, 3
    s_add_u32 s33, s33, {L_H1}
    v_mov_b32 v42, s33
    s_mov_b32 exec_lo, 0
    s_mov_b32 exec_hi, 0x80000000
    ds_write_b64 v42, v[40:41]
    s_mov_b64 exec, -1
    s_waitcnt lgkmcnt(0)
    s_barrier
    ds_read_b128 v[40:43], v7 offset:{L_H1}
    ds_read_b128 v[44:47], v7 offset:{L_H1+16}
    ds_read_b128 v[48:51], v7 offset:{L_H1+32}
    ds_read_b128 v[52:55], v7 offset:{L_H1+48}
    ds_read_b64 v[56:57], v7 offset:{L_H1+64}
    s_waitcnt lgkmcnt(0)
    v_mul_f32 v58, v40, v80
    """)
    for r in range(1, 18):
        e(f"v_fmac_f32 v58, v{40+r}, v{80+r}")
    tofix(58, 8, 9, 59)
    e(f"""
    s_add_u32 s33, s35, {WS_ACC2}
    buffer_atomic_add_x2 v[8:9], v12, s[20:23], s33 offen
    """)
    stamp(7)
    e(f"""
    s_cmp_lg_u32 s26, {PW}
    s_cbranch_scc1 K_fin
    s_cmp_ge_u32 s2, 36
    s_cbranch_scc1 K_end
    s_lshl_b32 s33, s2, 6
    v_add_u32 v106, s33, v105
    ds_read_b128 v[60:63], v106 offset:{L_HR}
    """)
    colpoll("K_cp2", WS_ACC2)
    e(f"""
    v_lshlrev_b32 v48, 16, v166
    v_and_b32 v49, 0xffff0000, v166
    v_lshlrev_b32 v50, 16, v167
    v_and_b32 v51, 0xffff0000, v167
    s_waitcnt lgkmcnt(0)
    """)
    for c in range(4):
        e(f"v_add_f32 v{44+c}, v{44+c}, v{48+c}")
        rbf(e, 44 + c, 44 + c)
        e(f"v_add_f32 v{44+c}, v{44+c}, v{60+c}")
    e(f"""
    v_cvt_pk_bf16_f32 v44, v44, v45
    v_cvt_pk_bf16_f32 v45, v46, v47
    v_lshrrev_b32 v106, 1, v105
    s_lshl_b32 s33, s2, 5
    s_mov_b32 exec_lo, 0x00010001
    s_mov_b32 exec_hi, 0x00010001
    buffer_store_dwordx2 v[44:45], v106, s[96:99], s33 offen
    s_mov_b64 exec, -1
    """)
    if DIAG:
        e(f"""
        s_memrealtime s[8:9]
        s_waitcnt lgkmcnt(0)
        v_mov_b32 v20, s8
        s_lshl_b32 s36, s2, 8
        s_add_u32 s36, s36, {WS_DIAG + 32}
        s_mov_b64 exec, 1
        buffer_store_dword v20, off, s[20:23], s36
        s_mov_b64 exec, -1
        """)
    e("s_branch K_end")
    e.label("K_fin")
    if DIAG:
        e(f"""
        s_cmp_lg_u32 s26, 0
        s_cbranch_scc1 K_end
        s_lshl_b32 s33, s2, 8
        s_add_u32 s33, s33, {WS_DIAG}
        v_lshlrev_b32 v41, 2, v1
        s_mov_b64 exec, 0xff
        buffer_store_dword v39, v41, s[20:23], s33 offen
        """)
    e.label("K_end")
    e("s_endpgm")
    return name


def main():
    ref = open(f"cdna_kernels/{NAME}.s.ref").read().split("\n")
    head = [l for l in ref if l.startswith(";") and "@launch" not in l and "Override launch" not in l and "grid=ceil" not in l]
    out = list(head)
    out.append(f"; @launch kernel=fused_kernel grid=({NWG},1,1) block=({NW*64},1,1) lds={LDS_BYTES}")
    out.append('.amdgcn_target "amdgcn-amd-amdhsa--gfx950"')
    out.append(".text")
    e = E()
    gen(e)
    s = "\n".join(out) + "\n" + e.text()
    s += '.section .rodata,"a"\n.p2align 6\n'
    s += kernel_desc("fused_kernel", NVGA, 102)
    open(OUT, "w").write(s)
    print("wrote", OUT, len(s))


if __name__ == "__main__":
    main()
```

```python
import sys, re, os
sys.path.insert(0, os.path.dirname(os.path.abspath(__file__)))
from gen import (E, srd, rbf, DPP_ROW, row_allreduce, wave_reduce_to_sgpr, div_precise, kernel_header,
                 kernel_desc, ln_wave, ln_mean, ln_finish_stats, ln_apply, NAME, LOG2E, SCALE)

OUT = os.environ.get("OUT", f"cdna_kernels/{NAME}.s")
DIAG = int(os.environ.get("DIAG", "0"))
NREP1 = int(os.environ.get("NREP1", "8"))
NREP2 = int(os.environ.get("NREP2", "8"))
PB = int(os.environ.get("PB", "32"))
NSUB = 4
SLEEP = int(os.environ.get("SLEEP", "1"))
PACE = int(os.environ.get("PACE", "1"))
WPACE = int(os.environ.get("WPACE", "4"))
WDELAY = int(os.environ.get("WDELAY", "0"))
SDELAY = int(os.environ.get("SDELAY", "0"))
FSLEEP = int(os.environ.get("FSLEEP", "3"))
NB = int(os.environ.get("NB", "3"))
POLL_MAX = int(os.environ.get("POLL_MAX", str(0x200000)))
NSTR = 4
NW = 9
HWV = 4
NWW = 4
NT = " nt"
WNT = int(os.environ.get("WNT", "0"))
WN = [" nt" if (WNT >> i) & 1 else "" for i in range(3)]
PK = [int(c) for c in os.environ.get("PK", "1111")]
PSP = int(os.environ.get("PSP", "4"))
PSL = [int(c) for c in os.environ.get("PSL", "1,1,1,1").split(",")]
PD = [int(c) for c in os.environ.get("PD", "0,0,0,28").split(",")]
KMASK = int(os.environ.get("KMASK", "0"))
VMASK = int(os.environ.get("VMASK", "0"))
APOL = os.environ.get("APOL", "").replace("_", " ")
KPOL = os.environ.get("KPOL", "nt").replace("_", " ")
VPOL = os.environ.get("VPOL", "nt").replace("_", " ")
SLOC = 256 - PB
LPB = PB.bit_length() - 1
PTOT = 16 * PB

WS_Q = 0
WS_ML = 65536
WS_CP = 73728
NRA = int(os.environ.get('NRA', '16'))
LRA = NRA.bit_length() - 1
LCP = 8 - LRA
NPOL = 576 >> LCP
RPL = NRA // 16
RST = 5120
WS_ACC1 = WS_CP + 16 * NSUB * 256
WS_ACC2 = WS_ACC1 + NRA * RST
NRH = NRA
HST = 3072
WS_HALL = WS_ACC2 + NRA * RST
WS_O = 524288
assert WS_HALL + NRH * HST <= WS_O
PW = 8
WS_DIAG = 1 << 21
WS_SIZE = 0x40000000
OOB = 0x7fff0000

L_WO = 0
L_W2 = 18432
L_W1 = L_W2 + 21504
L_Q = L_W1 + 20736
L_CNT = L_Q + 512
L_FLAG = L_CNT + 16
L_O16 = L_CNT + 64
L_H = 62848
L_HR = 0
L_H1 = L_H + 2304
L_CMB = 65536
L_MB = L_CMB + 16384
LDS_BYTES = L_MB + 1024

NWG = 256
U = 4
NVG = 64 + 32 * NB + 8
assert NB == 3
NVGA = (NVG + 7) // 8 * 8
assert NVGA <= 168


def gen(e):
    name = "fused_kernel"
    kernel_header(e, name)
    Q = 2
    M = 10
    L = 12
    O = 14
    S = 30
    VO = 38
    T = 40
    MX = 56
    AL = 58
    VG = [60, 61, 62, 63]
    KB = [64 + 32 * b for b in range(NB)]
    VB = [80 + 32 * b for b in range(NB)]
    LCA = 64 + 32 * NB
    LRES = LCA + 1
    CUR = [32, 33, 34, 35]
    NXT = [44, 45, 46, 47]

    def stamp(k):
        if not DIAG:
            return
        e(f"""
        s_memrealtime s[8:9]
        s_waitcnt lgkmcnt(0)
        v_writelane_b32 v39, s8, {k}
        """)

    def sleep():
        if SLEEP:
            e(f"s_sleep {SLEEP}")

    e(f"""
    s_cmp_ge_u32 s2, {NWG}
    s_cbranch_scc1 K_end
    s_load_dwordx4 s[40:43], s[0:1], 0
    s_load_dwordx4 s[44:47], s[0:1], 16
    s_load_dwordx2 s[48:49], s[0:1], 32
    s_load_dwordx4 s[52:55], s[0:1], 48
    s_load_dwordx4 s[56:59], s[0:1], 64
    s_load_dwordx4 s[60:63], s[0:1], 80
    s_load_dwordx2 s[64:65], s[0:1], 96
    v_and_b32 v1, 63, v0
    v_lshrrev_b32 v39, 6, v0
    v_lshlrev_b32 v{VO}, 4, v1
    v_readfirstlane_b32 s26, v39
    s_mov_b32 s29, {SCALE}
    s_mov_b32 s30, {LOG2E}
    s_lshr_b32 s24, s2, 4
    s_and_b32 s25, s2, 15
    s_and_b32 s3, s2, 7
    s_lshr_b32 s4, s2, 3
    s_lshl_b32 s28, s3, 5
    s_add_u32 s28, s28, s4
    s_lshl_b32 s27, s2, 20
    s_lshl_b32 s10, s24, 24
    v_mov_b32 v{LCA}, {L_CNT}
    v_mov_b32 v40, {2*NSTR*NB}
    v_mov_b32 v41, 0
    ds_write_b32 v{LCA}, v40
    ds_write_b32 v{LCA}, v41 offset:16
    s_waitcnt lgkmcnt(0)
    s_barrier
    """)
    if DIAG:
        e("v_mov_b32 v39, 0")
    stamp(0)
    srd(e, 12, 42, 0x10000000)
    srd(e, 16, 44, 0x10000000)
    srd(e, 20, 64, WS_SIZE)
    srd(e, 68, 40, 1152)
    srd(e, 72, 46, 576 * 8192)
    srd(e, 76, 48, 4096 * 1152)
    srd(e, 80, 52, 576 * 9216)
    srd(e, 84, 56, 4608 * 1152)
    srd(e, 88, 54, 9216)
    srd(e, 92, 58, 1152)
    srd(e, 96, 60, 1152)
    srd(e, 4, 62, 256)
    e(f"""
    s_mul_i32 s32, s28, 36
    s_lshl_b32 s33, s26, 2
    s_add_u32 s32, s32, s33
    buffer_load_dword v163, off, s[88:91], s32
    s_cmp_lg_u32 s26, {PW}
    s_cbranch_scc1 K_nopx
    v_lshrrev_b32 v162, {LRA}, v1
    v_lshlrev_b32 v162, 3, v162
    s_lshl_b32 s33, s2, {LCP+1}
    buffer_load_dwordx2 v[164:165], v162, s[68:71], s33 offen
    buffer_load_dwordx2 v[166:167], v162, s[92:95], s33 offen
    """)
    e.label("K_nopx")
    e(f"""
    s_cmp_eq_u32 s26, {HWV}
    s_cbranch_scc1 K_helper
    s_cmp_gt_u32 s26, {HWV}
    s_cbranch_scc1 K_wts
    """)

    def loadK(buf, soff):
        for u in range(U):
            e(f"buffer_load_dwordx4 v[{KB[buf]+4*u}:{KB[buf]+4*u+3}], v{VO}, s[12:15], s{soff} offen offset:{u*1024} {APOL if (KMASK>>u)&1 else KPOL}")

    def loadV(buf, soff):
        for u in range(U):
            e(f"buffer_load_dwordx4 v[{VB[buf]+4*u}:{VB[buf]+4*u+3}], v{VO}, s[16:19], s{soff} offen offset:{u*1024} {APOL if (VMASK>>u)&1 else VPOL}")

    def atom(buf, soff):
        e(f"""
        v_mov_b32 v{VG[buf]}, 1
        s_mov_b64 exec, 1
        buffer_atomic_add v{VG[buf]}, off, s[20:23], s{soff} sc0
        s_mov_b64 exec, -1
        """)

    e(f"""
    s_mul_i32 s3, s24, {NSUB}
    s_add_u32 s11, s26, s3
    s_lshl_b32 s11, s11, 8
    s_add_u32 s11, s11, {WS_CP}
    s_mov_b32 s31, s26
    s_lshl_b32 s36, s26, 12
    s_add_u32 s36, s36, s27
    s_mov_b32 s3, {OOB}
    """)
    for b in range(NB):
        e(f"s_add_u32 s{CUR[b]}, s36, {b*NSTR*4096}")
        e(f"s_add_u32 s{NXT[b]}, s36, {(NB+b)*NSTR*4096}")
    if SDELAY:
        e(f"s_sleep {SDELAY}")
    npw = [0]

    def pacewait():
        k = npw[0]
        npw[0] += 1
        e(f"""
        ds_read_b32 v40, v{LCA} offset:16
        s_waitcnt lgkmcnt(0)
        v_readfirstlane_b32 s36, v40
        s_nop 3
        s_cmp_lg_u32 s36, 0
        s_cbranch_scc1 K_pw{k}
        s_waitcnt vmcnt(0)
        """)
        e.label(f"K_pw{k}")
    for b in range(NB):
        atom(b, 3)
        loadK(b, CUR[b])
        if PACE == 2:
            pacewait()
        loadV(b, CUR[b])
        if PACE and b < NB - 1:
            pacewait()
    if int(os.environ.get("NOQWAIT", "0")):
        e("s_branch K_wqok")
    e.label("K_wq")
    e(f"""
    ds_read_b32 v40, v{LCA} offset:16
    s_waitcnt lgkmcnt(0)
    v_readfirstlane_b32 s36, v40
    s_nop 3
    s_cmp_lg_u32 s36, 0
    s_cbranch_scc1 K_wqok
    s_sleep 1
    s_branch K_wq
    """)
    e.label("K_wqok")
    stamp(1)
    e(f"""
    v_and_b32 v40, 15, v1
    v_lshlrev_b32 v40, 4, v40
    v_add_u32 v40, {L_Q}, v40
    ds_read_b128 v[{Q}:{Q+3}], v40
    ds_read_b128 v[{Q+4}:{Q+7}], v40 offset:256
    v_mov_b32 v{M}, 0xff800000
    v_mov_b32 v{M+1}, 0xff800000
    v_mov_b32 v{L}, 0
    v_mov_b32 v{L+1}, 0
    s_mov_b32 s66, 0
    """)
    for i in range(16):
        e(f"v_mov_b32 v{O+i}, 0")
    e("s_waitcnt lgkmcnt(0)")

    def scores(buf):
        kb = KB[buf]
        for j in range(4):
            for u in range(U):
                for h in range(2):
                    if j == 0:
                        e(f"v_dot2_f32_bf16 v{S+2*u+h}, v{kb+4*u}, v{Q+4*h}, 0")
                    else:
                        e(f"v_dot2c_f32_bf16 v{S+2*u+h}, v{kb+4*u+j}, v{Q+4*h+j}")

    def softmax_part():
        for c in DPP_ROW:
            for k in range(2 * U):
                e(f"v_add_f32_dpp v{S+k}, v{S+k}, v{S+k} {c} row_mask:0xf bank_mask:0xf")
        for u in range(U):
            e(f"v_cvt_pk_bf16_f32 v{T+u}, v{S+2*u}, v{S+2*u+1}")
        for u in range(U):
            e(f"v_lshlrev_b32 v{S+2*u}, 16, v{T+u}")
            e(f"v_and_b32 v{S+2*u+1}, 0xffff0000, v{T+u}")
        for k in range(2 * U):
            e(f"v_mul_f32 v{S+k}, s29, v{S+k}")
        for u in range(U):
            e(f"v_cvt_pk_bf16_f32 v{T+u}, v{S+2*u}, v{S+2*u+1}")
        for u in range(U):
            e(f"v_lshlrev_b32 v{S+2*u}, 16, v{T+u}")
            e(f"v_and_b32 v{S+2*u+1}, 0xffff0000, v{T+u}")
        for h in range(2):
            e(f"v_max3_f32 v{MX+h}, v{M+h}, v{S+h}, v{S+2+h}")
        for h in range(2):
            e(f"v_max3_f32 v{MX+h}, v{MX+h}, v{S+4+h}, v{S+6+h}")
        for h in range(2):
            e(f"v_sub_f32 v{AL+h}, v{M+h}, v{MX+h}")
        for k in range(2 * U):
            e(f"v_sub_f32 v{S+k}, v{S+k}, v{MX+(k&1)}")
        for h in range(2):
            e(f"v_mul_f32 v{AL+h}, s30, v{AL+h}")
        for k in range(2 * U):
            e(f"v_mul_f32 v{S+k}, s30, v{S+k}")
        for h in range(2):
            e(f"v_exp_f32 v{AL+h}, v{AL+h}")
        for k in range(2 * U):
            e(f"v_exp_f32 v{S+k}, v{S+k}")
        for h in range(2):
            e(f"v_mov_b32 v{M+h}, v{MX+h}")
        for h in range(2):
            e(f"v_mul_f32 v{L+h}, v{L+h}, v{AL+h}")
        for h in range(2):
            for i in range(8):
                e(f"v_mul_f32 v{O+8*h+i}, v{O+8*h+i}, v{AL+h}")
        for u in range(U):
            for h in range(2):
                e(f"v_add_f32 v{L+h}, v{L+h}, v{S+2*u+h}")

    def pv(buf):
        vb = VB[buf]
        for u in range(U):
            t = T + 8 * (u & 1)
            for j in range(4):
                e(f"v_lshlrev_b32 v{t+2*j}, 16, v{vb+4*u+j}")
                e(f"v_and_b32 v{t+2*j+1}, 0xffff0000, v{vb+4*u+j}")
            for h in range(2):
                for i in range(8):
                    e(f"v_fmac_f32 v{O+8*h+i}, v{S+2*u+h}, v{t+i}")

    e.label("K_loop")
    for buf in range(NB):
        cur = CUR[buf]
        nxt = NXT[buf]
        e(f"""
        s_cmp_eq_u32 s{cur}, {OOB}
        s_cbranch_scc1 K_done
        v_mov_b32 v{LRES}, 1
        s_mov_b64 exec, 1
        ds_add_rtn_u32 v{LRES}, v{LCA}, v{LRES}
        s_mov_b64 exec, -1
        s_waitcnt vmcnt({9*NB-5})
        v_readfirstlane_b32 s36, v{VG[buf]}
        """)
        scores(buf)
        e(f"""
        s_mul_i32 s36, s36, {NSUB}
        s_add_u32 s36, s36, s31
        s_lshr_b32 s37, s36, {LPB}
        s_lshl_b32 s37, s37, 20
        s_and_b32 s38, s36, {PB-1}
        s_add_u32 s38, s38, {SLOC}
        s_lshl_b32 s38, s38, 12
        s_add_u32 s37, s37, s38
        s_add_u32 s37, s37, s10
        s_cmp_lt_u32 s36, {PTOT}
        s_cselect_b32 s37, s37, {OOB}
        s_cmp_eq_u32 s{nxt}, -1
        s_cselect_b32 s{cur}, s37, s{nxt}
        s_waitcnt lgkmcnt(0)
        v_readfirstlane_b32 s36, v{LRES}
        s_nop 3
        s_lshl_b32 s37, s36, 12
        s_add_u32 s37, s37, s27
        s_cmp_lt_u32 s36, {SLOC}
        s_cselect_b32 s{nxt}, s37, -1
        s_cselect_b32 s3, {OOB}, s11
        """)
        if DIAG:
            e("s_add_u32 s66, s66, 1")
        atom(buf, 3)
        loadK(buf, cur)
        softmax_part()
        e(f"s_waitcnt vmcnt({9*NB-4})")
        pv(buf)
        loadV(buf, cur)
    e("s_branch K_loop")
    e.label("K_done")
    stamp(2)
    if DIAG:
        e(f"""
        v_mov_b32 v40, s8
        v_mov_b32 v41, s66
        s_lshl_b32 s33, s2, 7
        s_lshl_b32 s34, s26, 3
        s_add_u32 s33, s33, s34
        s_add_u32 s33, s33, {WS_DIAG + 65536}
        s_mov_b64 exec, 1
        buffer_store_dwordx2 v[40:41], off, s[20:23], s33
        s_mov_b64 exec, -1
        """)
    e(f"""
    v_lshrrev_b32 v40, 4, v0
    v_and_b32 v41, 15, v1
    v_lshlrev_b32 v42, 10, v40
    v_lshl_add_u32 v42, v41, 5, v42
    v_add_u32 v42, {L_CMB}, v42
    ds_write_b128 v42, v[{O}:{O+3}]
    ds_write_b128 v42, v[{O+4}:{O+7}] offset:16
    ds_write_b128 v42, v[{O+8}:{O+11}] offset:512
    ds_write_b128 v42, v[{O+12}:{O+15}] offset:528
    v_lshlrev_b32 v43, 2, v40
    v_add_u32 v43, {L_MB}, v43
    ds_write_b32 v43, v{M}
    ds_write_b32 v43, v{M+1} offset:256
    ds_write_b32 v43, v{L} offset:512
    ds_write_b32 v43, v{L+1} offset:768
    s_branch K_tail
    """)

    e.label("K_wts")
    e(f"""
    s_sub_u32 s31, s26, {HWV+1}
    s_cmp_lg_u32 s25, 0
    s_cbranch_scc1 K_noinit
    s_cmp_lg_u32 s31, 0
    s_cbranch_scc1 K_noinit
    v_mov_b32 v40, -1
    v_mov_b32 v41, -1
    v_mov_b32 v42, -1
    v_mov_b32 v43, -1
    v_mov_b32 v44, 0
    v_mov_b32 v45, 0
    v_mov_b32 v46, 0
    v_mov_b32 v47, 0
    s_lshl_b32 s32, s24, 12
    s_mul_i32 s33, s24, {NSUB*256}
    s_add_u32 s33, s33, {WS_CP}
    buffer_load_dword v48, off, s[4:7], 0 offset:192
    """)
    for i in range(4):
        e(f"buffer_store_dwordx4 v[40:43], v{VO}, s[20:23], s32 offen offset:{WS_Q+i*1024} sc0 sc1")
    e(f"buffer_store_dwordx4 v[44:47], v{VO}, s[20:23], s33 offen sc0 sc1")
    e(f"""
    s_mul_i32 s33, s24, {RST*RPL}
    s_add_u32 s33, s33, {WS_ACC1}
    s_add_u32 s35, s33, {NRA*RST}
    s_mul_i32 s34, s24, {HST*RPL}
    s_add_u32 s34, s34, {WS_HALL}
    s_lshl_b32 s32, s24, 2
    v_mov_b32 v49, 1
    s_waitcnt vmcnt(0)
    s_mov_b64 exec, 1
    buffer_store_dword v49, off, s[4:7], s32 sc0 sc1
    s_mov_b64 exec, -1
    """)
    for sr, n, vr in ((33, RST * RPL // 1024, 44), (35, RST * RPL // 1024, 44), (34, HST * RPL // 1024, 40)):
        for i in range(n):
            e(f"buffer_store_dwordx4 v[{vr}:{vr+3}], v{VO}, s[20:23], s{sr} offen offset:{(i&3)*1024} sc0 sc1")
            if (i & 3) == 3:
                e(f"s_add_u32 s{sr}, s{sr}, 4096")
    e(f"""
    s_waitcnt vmcnt(0)
    s_mov_b64 exec, 1
    buffer_store_dword v49, off, s[4:7], s32 offset:128 sc0 sc1
    s_mov_b64 exec, -1
    """)
    e.label("K_noinit")
    if WDELAY:
        e(f"s_sleep {WDELAY}")
    cnt = [0]

    def wpace(n):
        cnt[0] += n
        if WPACE and cnt[0] >= WPACE * 4:
            e("s_waitcnt vmcnt(0)")
            cnt[0] = 0

    def wtasks(lbl, ntask, srdn, base_code, ldsbase):
        e(base_code)
        e(f"""
        s_lshl_b32 s37, s31, 10
        s_add_u32 s36, s36, s37
        s_add_u32 s38, s37, {ldsbase}
        """)
        k = 0
        while k * NWW < ntask:
            if (k + 1) * NWW > ntask:
                e(f"s_cmp_ge_u32 s31, {ntask - k*NWW}")
                e(f"s_cbranch_scc1 {lbl}")
            e(f"""
            s_mov_b32 m0, s38
            s_nop 0
            buffer_load_dwordx4 v{VO}, s[{srdn}:{srdn+3}], s36 offen{WN[1]} lds
            s_add_u32 s36, s36, {NWW*1024}
            s_add_u32 s38, s38, {NWW*1024}
            """)
            wpace(4)
            k += 1
        e.label(lbl)
    wtasks("K_wo_done", 18, 76, f"""
    s_lshl_b32 s36, s24, 4
    s_add_u32 s36, s36, s25
    s_mul_i32 s36, s36, {16*1152}
    """, L_WO)
    wtasks("K_w2_done", 21, 84, "s_mul_i32 s36, s28, 20736", L_W2)
    e(f"""
    s_mul_i32 s36, s28, 36
    s_lshl_b32 s37, s31, 8
    s_add_u32 s38, s37, {L_W1}
    s_movk_i32 s39, 9216
    v_subrev_u32 v30, {(HWV+1)*64}, v0
    """)
    k = 0
    while k * NWW < 81:
        if (k + 1) * NWW > 81:
            e(f"s_cmp_ge_u32 s31, {81 - k*NWW}")
            e("s_cbranch_scc1 K_w1_done")
        e(f"""
        v_add_u32 v31, {k*NWW*64}, v30
        v_mul_u32_u24 v32, 7282, v31
        v_lshrrev_b32 v32, 16, v32
        v_mul_u32_u24 v33, 9, v32
        v_sub_u32 v33, v31, v33
        v_mul_u32_u24 v32, s39, v32
        v_lshl_add_u32 v32, v33, 2, v32
        s_mov_b32 m0, s38
        s_add_u32 s38, s38, {NWW*256}
        buffer_load_dword v32, s[80:83], s36 offen{WN[2]} lds
        """)
        wpace(2)
        k += 1
    e.label("K_w1_done")
    e("s_branch K_tail")

    e.label("K_helper")
    X = 14
    WR = 64
    LNV = 40
    e("v_lshlrev_b32 v40, 1, v1")
    for i in range(9):
        e(f"buffer_load_ushort v{X+i}, v40, s[68:71], 0 offen offset:{i*128}")
    e(f"""
    v_lshrrev_b32 v41, 3, v1
    v_mul_u32_u24 v40, {18*8192}, v41
    v_and_b32 v42, 7, v1
    v_lshl_add_u32 v40, v42, 4, v40
    s_lshr_b32 s33, s25, 2
    s_and_b32 s34, s25, 3
    s_mul_i32 s32, s33, {144*8192}
    s_lshl_b32 s35, s24, 9
    s_add_u32 s32, s32, s35
    s_lshl_b32 s35, s34, 7
    s_add_u32 s32, s32, s35
    """)
    for i in range(18):
        e(f"buffer_load_dwordx4 v[{WR+4*i}:{WR+4*i+3}], v40, s[72:75], s32 offen{WN[0]}")
        if i < 17:
            e("s_add_u32 s32, s32, 0x2000")
    e(f"""
    v_mul_u32_u24 v34, 72, v41
    s_mul_i32 s35, s33, 576
    s_add_u32 s35, s35, {L_H}
    v_add_u32 v34, s35, v34
    """)
    e(f"""
    v_mov_b32 v40, -1
    v_mov_b32 v41, -1
    v_lshrrev_b32 v42, 4, v1
    v_lshlrev_b32 v42, 10, v42
    v_and_b32 v43, 15, v1
    v_lshl_add_u32 v42, v43, 2, v42
    s_lshl_b32 s36, s24, 14
    s_lshl_b32 s37, s25, 6
    s_add_u32 s36, s36, s37
    s_add_u32 s36, s36, {WS_O}
    buffer_store_dword v40, v42, s[20:23], s36 offen sc0 sc1
    s_add_u32 s36, s36, 4096
    buffer_store_dword v40, v42, s[20:23], s36 offen sc0 sc1
    s_add_u32 s36, s36, 4096
    buffer_store_dword v40, v42, s[20:23], s36 offen sc0 sc1
    s_add_u32 s36, s36, 4096
    buffer_store_dword v40, v42, s[20:23], s36 offen sc0 sc1
    s_lshl_b32 s36, s24, 8
    s_lshl_b32 s37, s25, 3
    s_add_u32 s36, s36, s37
    s_add_u32 s36, s36, {WS_ML}
    s_mov_b64 exec, 1
    buffer_store_dwordx2 v[40:41], off, s[20:23], s36 sc0 sc1
    buffer_store_dwordx2 v[40:41], off, s[20:23], s36 offset:128 sc0 sc1
    s_mov_b64 exec, -1
    s_lshl_b32 s66, s24, 2
    buffer_load_dword v37, off, s[4:7], 0 offset:192
    s_waitcnt vmcnt(25)
    """)
    stamp(1)
    ln_wave(e, X=X, LN=X, T=23, S=36)
    e("v_lshlrev_b32 v40, 2, v1")
    for i in range(9):
        e(f"ds_write_b32 v40, v{X+i} offset:{L_H+i*256}")
    e("s_waitcnt lgkmcnt(0)")
    for i in range(9):
        e(f"ds_read_b64 v[{LNV+2*i}:{LNV+2*i+1}], v34 offset:{i*8}")
    ACC = list(range(2, 10))
    for c in range(8):
        e(f"v_mov_b32 v{ACC[c]}, 0")
    e("s_waitcnt vmcnt(0) lgkmcnt(0)")
    stamp(2)
    e("buffer_load_dword v36, off, s[4:7], s66 sc0 sc1")
    for i in range(18):
        for j in range(4):
            w = WR + 4 * i + j
            e(f"v_lshlrev_b32 v{10+(j&1)*2}, 16, v{w}")
            e(f"v_and_b32 v{11+(j&1)*2}, 0xffff0000, v{w}")
            e(f"v_fmac_f32 v{ACC[2*j]}, v{LNV+i}, v{10+(j&1)*2}")
            e(f"v_fmac_f32 v{ACC[2*j+1]}, v{LNV+i}, v{11+(j&1)*2}")
    e("s_nop 1")
    for c in range(4):
        e(f"v_permlane32_swap_b32 v{ACC[c]}, v{ACC[c+4]}")
    e("s_nop 1")
    for c in range(4):
        e(f"v_add_f32 v{ACC[c]}, v{ACC[c]}, v{ACC[c+4]}")
    e("s_nop 1")
    for c in range(2):
        e(f"v_permlane16_swap_b32 v{ACC[c]}, v{ACC[c+2]}")
    e("s_nop 1")
    for c in range(2):
        e(f"v_add_f32 v{ACC[c]}, v{ACC[c]}, v{ACC[c+2]}")
    e("s_nop 1")
    for c in range(2):
        e(f"v_add_f32_dpp v{ACC[c]}, v{ACC[c]}, v{ACC[c]} row_ror:8 row_mask:0xf bank_mask:0xf")
    e(f"""
    v_and_b32 v40, 7, v1
    v_lshlrev_b32 v40, 5, v40
    v_lshrrev_b32 v41, 4, v1
    v_lshl_add_u32 v40, v41, 3, v40
    v_and_b32 v43, 8, v1
    s_lshl_b32 s32, s24, 12
    s_lshl_b32 s35, s33, 10
    s_add_u32 s35, s35, s32
    s_lshl_b32 s34, s34, 8
    s_add_u32 s35, s35, s34
    s_mov_b32 s39, 0
    """)
    e.label("K_flagchk")
    e(f"""
    s_waitcnt vmcnt(0)
    v_readfirstlane_b32 s36, v36
    s_add_u32 s39, s39, 1
    s_nop 3
    s_cmp_lg_u32 s36, 0
    s_cbranch_scc1 K_flagok
    s_cmp_ge_u32 s39, {POLL_MAX}
    s_cbranch_scc1 K_flagok
    s_sleep {FSLEEP}
    buffer_load_dword v36, off, s[4:7], s66 sc0 sc1
    s_branch K_flagchk
    """)
    e.label("K_flagok")
    e(f"""
    v_cmp_eq_u32 vcc, 0, v43
    s_and_saveexec_b64 s[36:37], vcc
    buffer_store_dwordx2 v[{ACC[0]}:{ACC[1]}], v40, s[20:23], s35 offen offset:{WS_Q} sc0 sc1
    s_mov_b64 exec, -1
    s_mov_b32 s39, 0
    """)
    stamp(3)
    e.label("K_qpoll")
    for r in range(4):
        e(f"buffer_load_dwordx4 v[{44+4*r}:{47+4*r}], v{VO}, s[20:23], s32 offen offset:{WS_Q+r*1024} sc0 sc1")
    e("s_waitcnt vmcnt(0)")
    e("v_max3_u32 v60, v44, v45, v46")
    for r in range(47, 59, 2):
        e(f"v_max3_u32 v60, v60, v{r}, v{r+1}")
    e(f"""
    v_max_u32 v60, v60, v59
    v_cmp_ne_u32 vcc, -1, v60
    s_add_u32 s39, s39, 1
    s_nop 3
    s_cmp_eq_u64 vcc, exec
    s_cbranch_scc1 K_qok
    s_cmp_ge_u32 s39, {POLL_MAX}
    s_cbranch_scc1 K_qok
    """)
    sleep()
    e("s_branch K_qpoll")
    e.label("K_qok")
    for c in range(4):
        e(f"v_add_f32 v{44+c}, v{44+c}, v{48+c}")
        e(f"v_add_f32 v{52+c}, v{52+c}, v{56+c}")
    for c in range(4):
        e(f"v_add_f32 v{44+c}, v{44+c}, v{52+c}")
    e(f"""
    v_cvt_pk_bf16_f32 v40, v44, v45
    v_cvt_pk_bf16_f32 v41, v46, v47
    v_lshlrev_b32 v42, 3, v1
    v_mov_b32 v43, 1
    ds_write_b64 v42, v[40:41] offset:{L_Q}
    s_waitcnt lgkmcnt(0)
    ds_write_b32 v{LCA}, v43 offset:16
    v_lshlrev_b32 v42, 2, v1
    s_mov_b32 s39, 0
    """)
    stamp(4)
    e("s_mov_b64 exec, 0xffff")
    e("s_sleep 100")
    e.label("K_fbpoll")
    e(f"""
    buffer_load_dword v44, v42, s[4:7], 0 offen offset:128 sc0 sc1
    s_waitcnt vmcnt(0)
    v_cmp_ne_u32 vcc, 0, v44
    s_add_u32 s39, s39, 1
    s_nop 3
    s_cmp_eq_u64 vcc, exec
    s_cbranch_scc1 K_fbok
    s_cmp_ge_u32 s39, {POLL_MAX}
    s_cbranch_scc1 K_fbok
    s_sleep 32
    s_branch K_fbpoll
    """)
    e.label("K_fbok")
    e("s_mov_b64 exec, -1")
    stamp(5)
    if DIAG:
        e(f"""
        s_lshl_b32 s36, s2, 8
        s_add_u32 s36, s36, {WS_DIAG + 131072}
        v_lshlrev_b32 v41, 2, v1
        buffer_store_dword v39, v41, s[20:23], s36 offen
        """)

    def pipepoll(lbl, idx, n, issue, check, fin):
        K = PK[idx]
        e("s_mov_b32 s39, 0")
        if PD[idx]:
            e(f"s_sleep {PD[idx]}")
        for i in range(K):
            issue(i)
            if i < K - 1 and PSP:
                e(f"s_sleep {PSP}")
        e.label(lbl)
        for i in range(K):
            e(f"s_waitcnt vmcnt({n*(K-1)})")
            check(i)
            e(f"""
            s_nop 3
            s_cmp_eq_u64 vcc, exec
            s_cbranch_scc1 {lbl}_f{i}
            """)
            if K == 1 and PSL[idx]:
                e(f"s_sleep {PSL[idx]}")
            issue(i)
        e(f"""
        s_add_u32 s39, s39, 1
        s_cmp_lt_u32 s39, {POLL_MAX}
        s_cbranch_scc1 {lbl}
        s_waitcnt vmcnt(0)
        """)
        for i in range(K):
            e.label(f"{lbl}_f{i}")
            fin(i)
            if i < K - 1:
                e(f"s_branch {lbl}_d")
        e.label(f"{lbl}_d")

    e.label("K_tail")
    e(f"""
    v_lshlrev_b32 v5, 1, v0
    v_lshlrev_b32 v6, 2, v0
    v_mov_b32 v7, 0
    v_and_b32 v13, {NRA-1}, v1
    v_mul_u32_u24 v104, {HST}, v13
    v_mul_u32_u24 v13, {RST}, v13
    v_lshrrev_b32 v105, {LRA}, v1
    v_lshl_add_u32 v13, v105, 5, v13
    v_lshlrev_b32 v105, 4, v105
    v_add_u32 v104, v104, v105
    s_waitcnt vmcnt(0) lgkmcnt(0)
    s_barrier
    """)
    stamp(3 if True else 0)
    e(f"""
    s_cmp_ge_u32 s26, 4
    s_cbranch_scc1 K_nocomb
    s_lshr_b32 s31, s26, 1
    s_and_b32 s32, s26, 1
    s_lshl_b32 s33, s31, 8
    v_lshlrev_b32 v43, 2, v1
    v_add_u32 v43, s33, v43
    v_add_u32 v43, {L_MB}, v43
    ds_read_b32 v44, v43
    ds_read_b32 v45, v43 offset:512
    s_lshl_b32 s33, s31, 9
    s_lshl_b32 s34, s32, 8
    s_add_u32 s33, s33, s34
    s_add_u32 s33, s33, {L_CMB}
    v_lshlrev_b32 v46, 2, v1
    v_add_u32 v46, s33, v46
    """)
    NG = 4 * NSTR
    for g in range(NG):
        e(f"ds_read_b32 v{64+g}, v46 offset:{g*1024}")
    e("s_waitcnt lgkmcnt(0)")
    e(f"""
    v_cmp_gt_u32 vcc, {NG}, v1
    v_mov_b32 v47, 0xff800000
    v_cndmask_b32 v44, v47, v44, vcc
    v_cndmask_b32 v45, 0, v45, vcc
    v_mov_b32 v47, v44
    """)
    wave_reduce_to_sgpr(e, "v_max_f32", 47, 36)
    e(f"""
    v_subrev_f32 v47, s36, v44
    v_mul_f32 v47, s30, v47
    v_exp_f32 v47, v47
    s_nop 0
    v_mul_f32 v48, v47, v45
    """)
    wave_reduce_to_sgpr(e, "v_add_f32", 48, 37)
    e("v_mov_b32 v49, 0")
    for g in range(NG):
        e(f"v_readlane_b32 s{40+(g&3)}, v47, {g}")
        if (g & 3) == 3:
            e("s_nop 1")
            for k in range(4):
                e(f"v_fmac_f32 v49, s{40+k}, v{64+g-3+k}")
    e(f"""
    s_lshl_b32 s33, s24, 1
    s_add_u32 s33, s33, s31
    s_lshl_b32 s34, s33, 13
    s_lshl_b32 s35, s32, 12
    s_add_u32 s34, s34, s35
    s_lshl_b32 s35, s25, 6
    s_add_u32 s34, s34, s35
    s_add_u32 s34, s34, {WS_O}
    v_lshrrev_b32 v46, 4, v1
    v_lshlrev_b32 v46, 10, v46
    v_and_b32 v50, 15, v1
    v_lshl_add_u32 v46, v50, 2, v46
    buffer_store_dword v49, v46, s[20:23], s34 offen sc0 sc1
    s_cmp_lg_u32 s32, 0
    s_cbranch_scc1 K_nocomb
    s_lshl_b32 s34, s33, 4
    s_add_u32 s34, s34, s25
    s_lshl_b32 s34, s34, 3
    s_add_u32 s34, s34, {WS_ML}
    v_mov_b32 v50, s36
    v_mov_b32 v51, s37
    s_mov_b64 exec, 1
    buffer_store_dwordx2 v[50:51], v7, s[20:23], s34 offen sc0 sc1
    s_mov_b64 exec, -1
    """)
    e.label("K_nocomb")
    for r in range(16):
        e(f"v_mov_b32 v{64+r}, 0")
    for r in range(16):
        e(f"ds_read_u16_d16_hi v{64+r}, v5 offset:{L_WO+r*1152}")
    e(f"""
    s_cmp_lg_u32 s26, 4
    s_cbranch_scc1 K_noo16
    s_lshl_b32 s33, s24, 1
    s_lshr_b32 s34, s25, 3
    s_add_u32 s33, s33, s34
    s_lshl_b32 s32, s33, 7
    s_add_u32 s32, s32, {WS_ML}
    v_lshrrev_b32 v40, 2, v1
    v_lshlrev_b32 v40, 3, v40
    s_lshl_b32 s33, s33, 3
    s_and_b32 s34, s25, 7
    s_add_u32 s33, s33, s34
    s_lshl_b32 s33, s33, 10
    s_add_u32 s33, s33, {WS_O}
    """)

    def p1_issue(i):
        b = 108 + 8 * i
        e(f"""
        buffer_load_dwordx2 v[{b}:{b+1}], v40, s[20:23], s32 offen sc0 sc1
        buffer_load_dwordx4 v[{b+2}:{b+5}], v{VO}, s[20:23], s33 offen sc0 sc1
        """)

    def p1_check(i):
        b = 108 + 8 * i
        e(f"""
        v_max3_u32 v52, v{b}, v{b+1}, v{b+2}
        v_max3_u32 v52, v52, v{b+3}, v{b+4}
        v_max_u32 v52, v52, v{b+5}
        v_cmp_ne_u32 vcc, -1, v52
        """)

    def p1_fin(i):
        b = 108 + 8 * i
        e(f"v_mov_b32 v44, v{b}")
        e(f"v_mov_b32 v45, v{b+1}")
        for c in range(4):
            e(f"v_mov_b32 v{48+c}, v{b+2+c}")
    pipepoll("K_poll1", 0, 2, p1_issue, p1_check, p1_fin)
    e("v_mov_b32 v47, v44")
    wave_reduce_to_sgpr(e, "v_max_f32", 47, 36)
    e(f"""
    v_subrev_f32 v47, s36, v44
    v_mul_f32 v47, s30, v47
    v_exp_f32 v47, v47
    s_nop 0
    v_mul_f32 v52, v47, v45
    v_mul_f32 v52, 0.25, v52
    """)
    wave_reduce_to_sgpr(e, "v_add_f32", 52, 37)
    for c in range(4):
        e(f"v_mul_f32 v{48+c}, v{48+c}, v47")
    for d in ["row_ror:4", "row_ror:8"]:
        e("s_nop 1")
        for c in range(4):
            e(f"v_add_f32_dpp v{48+c}, v{48+c}, v{48+c} {d} row_mask:0xf bank_mask:0xf")
    for sw in ["v_permlane16_swap_b32", "v_permlane32_swap_b32"]:
        for c in range(4):
            e(f"v_mov_b32 v{52+c}, v{48+c}")
        e("s_nop 1")
        for c in range(4):
            e(f"{sw} v{48+c}, v{52+c}")
        e("s_nop 1")
        for c in range(4):
            e(f"v_add_f32 v{48+c}, v{48+c}, v{52+c}")
    e("v_mov_b32 v56, s37")
    for c in range(4):
        div_precise(e, 52 + c, 48 + c, 56, 57, 58)
        rbf(e, 52 + c, 52 + c)
    e(f"""
    v_add_u32 v40, {L_O16}, v{VO}
    s_mov_b64 exec, 15
    ds_write_b128 v40, v[52:55]
    s_mov_b64 exec, -1
    """)
    e.label("K_noo16")
    e(f"""
    s_waitcnt lgkmcnt(0)
    s_barrier
    ds_read_b128 v[40:43], v7 offset:{L_O16}
    ds_read_b128 v[44:47], v7 offset:{L_O16+16}
    ds_read_b128 v[48:51], v7 offset:{L_O16+32}
    ds_read_b128 v[52:55], v7 offset:{L_O16+48}
    s_waitcnt lgkmcnt(0)
    v_mul_f32 v58, v40, v64
    """)
    for r in range(1, 16):
        e(f"v_fmac_f32 v58, v{40+r}, v{64+r}")

    def tofix(v, lo, hi, t):
        e(f"""
        v_mul_f32 v{t}, 0x43800000, v{v}
        v_floor_f32 v{hi}, v{t}
        v_sub_f32 v{t}, v{t}, v{hi}
        v_cvt_i32_f32 v{hi}, v{hi}
        v_mul_f32 v{t}, 0x4f800000, v{t}
        v_cvt_u32_f32 v{lo}, v{t}
        v_and_b32 v{lo}, 0xfffffe00, v{lo}
        v_or_b32 v{lo}, 1, v{lo}
        """)

    def colpoll(lbl, base, K):
        e(f"""
        s_lshl_b32 s33, s2, {LCP+3}
        s_add_u32 s33, s33, {base}
        v_mov_b32 v56, 0x2b800000
        """)

        def issue(i):
            b = 108 + 8 * i
            e(f"""
            buffer_load_dwordx4 v[{b}:{b+3}], v13, s[20:23], s33 offen sc0 sc1
            buffer_load_dwordx4 v[{b+4}:{b+7}], v13, s[20:23], s33 offen offset:16 sc0 sc1
            """)

        def check(i):
            b = 108 + 8 * i
            e(f"""
            v_and_b32 v52, v{b}, v{b+2}
            v_and_b32 v53, v{b+4}, v{b+6}
            v_or_b32 v54, v{b}, v{b+2}
            v_or3_b32 v54, v54, v{b+4}, v{b+6}
            v_and_b32 v52, v52, v53
            v_and_b32 v52, 0x1ff, v52
            v_and_b32 v54, 0x1ff, v54
            v_lshl_or_b32 v52, v54, 16, v52
            v_cmp_eq_u32 vcc, {(NWG//NRA) * 0x10001}, v52
            """)

        def fin(i):
            b = 108 + 8 * i
            for c in range(4):
                e(f"""
                v_and_b32 v{44+2*c}, 0xfffffe00, v{b+2*c}
                v_cvt_f32_i32 v{45+2*c}, v{b+1+2*c}
                """)
        pipepoll(lbl, K, 2, issue, check, fin)
        for c in range(4):
            e(f"""
            v_cvt_f32_u32 v{44+2*c}, v{44+2*c}
            v_mul_f32 v{45+2*c}, 0x3b800000, v{45+2*c}
            """)
        for c in range(4):
            e(f"v_fma_f32 v{52+c}, v{44+2*c}, v56, v{45+2*c}")
        for d in DPP_ROW:
            e("s_nop 0")
            for c in range(4):
                e(f"v_add_f32_dpp v{52+c}, v{52+c}, v{52+c} {d} row_mask:0xf bank_mask:0xf")
        if NRA == 32:
            for c in range(4):
                e(f"v_mov_b32 v{44+c}, v{52+c}")
            e("s_nop 1")
            for c in range(4):
                e(f"v_permlane16_swap_b32 v{52+c}, v{44+c}")
            e("s_nop 1")
            for c in range(4):
                e(f"v_add_f32 v{52+c}, v{52+c}, v{44+c}")
        for c in range(4):
            rbf(e, 44 + c, 52 + c)

    tofix(58, 8, 9, 59)
    e(f"""
    v_lshlrev_b32 v12, 3, v0
    s_and_b32 s35, s2, {NRA-1}
    s_mul_i32 s35, s35, {RST}
    s_add_u32 s33, s35, {WS_ACC1}
    buffer_atomic_add_x2 v[8:9], v12, s[20:23], s33 offen
    """)
    stamp(4)
    e(f"""
    v_mul_u32_u24 v41, 36, v1
    s_lshl_b32 s33, s26, 2
    s_add_u32 s33, s33, {L_W1}
    v_add_u32 v41, s33, v41
    """)
    for i in range(9):
        e(f"ds_read_b32 v{64+i}, v41 offset:{i*64*36}")
    for r in range(18):
        e(f"v_mov_b32 v{80+r}, 0")
    for r in range(18):
        e(f"ds_read_u16_d16_hi v{80+r}, v5 offset:{L_W2+r*1152}")
    e(f"""
    s_cmp_lg_u32 s26, {PW}
    s_cbranch_scc1 K_nopub
    s_cmp_ge_u32 s2, {NPOL}
    s_cbranch_scc1 K_nopub
    """)
    colpoll("K_cp1", WS_ACC1, 1)
    e(f"""
    v_lshlrev_b32 v48, 16, v164
    v_and_b32 v49, 0xffff0000, v164
    v_lshlrev_b32 v50, 16, v165
    v_and_b32 v51, 0xffff0000, v165
    """)
    for c in range(4):
        e(f"v_add_f32 v{44+c}, v{44+c}, v{48+c}")
        rbf(e, 44 + c, 44 + c)
    e(f"""
    s_lshl_b32 s33, s2, {LCP+2}
    s_add_u32 s33, s33, {WS_HALL}
    buffer_store_dwordx4 v[44:47], v104, s[20:23], s33 offen sc0 sc1
    """)
    e.label("K_nopub")
    stamp(5)
    XH = 14
    e(f"""
    s_cmp_lg_u32 s26, 4
    s_cbranch_scc1 K_noln
    s_and_b32 s33, s2, {NRH-1}
    s_mul_i32 s33, s33, {HST}
    s_add_u32 s33, s33, {WS_HALL}
    v_lshlrev_b32 v41, 2, v1
    """)

    def p2_issue(i):
        b = 130 + 10 * i
        e(f"""
        buffer_load_dwordx4 v[{b}:{b+3}], v{VO}, s[20:23], s33 offen sc0 sc1
        buffer_load_dwordx4 v[{b+4}:{b+7}], v{VO}, s[20:23], s33 offen offset:1024 sc0 sc1
        buffer_load_dword v{b+8}, v41, s[20:23], s33 offen offset:2048 sc0 sc1
        """)

    def p2_check(i):
        b = 130 + 10 * i
        e(f"""
        v_max3_u32 v52, v{b}, v{b+1}, v{b+2}
        v_max3_u32 v52, v52, v{b+3}, v{b+4}
        v_max3_u32 v52, v52, v{b+5}, v{b+6}
        v_max3_u32 v52, v52, v{b+7}, v{b+8}
        v_cmp_ne_u32 vcc, -1, v52
        """)

    def p2_fin(i):
        b = 130 + 10 * i
        for c in range(9):
            e(f"v_mov_b32 v{XH+c}, v{b+c}")
    pipepoll("K_poll2", 2, 3, p2_issue, p2_check, p2_fin)
    e(f"""
    ds_write_b128 v{VO}, v[{XH}:{XH+3}] offset:{L_HR}
    ds_write_b128 v{VO}, v[{XH+4}:{XH+7}] offset:{L_HR+1024}
    ds_write_b32 v41, v{XH+8} offset:{L_HR+2048}
    """)
    TT = 23
    e(f"v_add_f32 v{TT}, v{XH}, v{XH+1}")
    for i in range(2, 9):
        e(f"v_add_f32 v{TT}, v{TT}, v{XH+i}")
    wave_reduce_to_sgpr(e, "v_add_f32", TT, 36)
    ln_mean(e, TT, 36)
    e(f"v_sub_f32 v{TT+1}, v{XH}, v{TT}")
    e(f"v_mul_f32 v{TT+2}, v{TT+1}, v{TT+1}")
    for i in range(1, 9):
        e(f"v_sub_f32 v{TT+1}, v{XH+i}, v{TT}")
        e(f"v_fmac_f32 v{TT+2}, v{TT+1}, v{TT+1}")
    wave_reduce_to_sgpr(e, "v_add_f32", TT + 2, 36)
    ln_finish_stats(e, TT, 36)
    for i in range(9):
        ln_apply(e, XH + i, XH + i, TT)
    e(f"""
    ds_write_b128 v{VO}, v[{XH}:{XH+3}] offset:{L_H}
    ds_write_b128 v{VO}, v[{XH+4}:{XH+7}] offset:{L_H+1024}
    ds_write_b32 v41, v{XH+8} offset:{L_H+2048}
    """)
    e.label("K_noln")
    e(f"""
    v_lshlrev_b32 v41, 2, v1
    s_waitcnt lgkmcnt(0)
    s_barrier
    """)
    stamp(6)
    for i in range(9):
        e(f"ds_read_b32 v{XH+i}, v41 offset:{L_H+i*256}")
    e("s_waitcnt lgkmcnt(0)")
    for i in range(9):
        e(f"v_lshlrev_b32 v42, 16, v{64+i}")
        e(f"v_and_b32 v43, 0xffff0000, v{64+i}")
        if i == 0:
            e(f"v_mul_f32 v40, v{XH+i}, v42")
            e(f"v_mul_f32 v41, v{XH+i}, v43")
        else:
            e(f"v_fmac_f32 v40, v{XH+i}, v42")
            e(f"v_fmac_f32 v41, v{XH+i}, v43")
    for c in DPP_ROW:
        e("s_nop 0")
        for k in range(2):
            e(f"v_add_f32_dpp v{40+k}, v{40+k}, v{40+k} {c} row_mask:0xf bank_mask:0xf")
    e("s_nop 0")
    for k in range(2):
        e(f"v_add_f32_dpp v{40+k}, v{40+k}, v{40+k} row_bcast:15 row_mask:0xa bank_mask:0xf")
    e("s_nop 0")
    for k in range(2):
        e(f"v_add_f32_dpp v{40+k}, v{40+k}, v{40+k} row_bcast:31 row_mask:0xc bank_mask:0xf")
    e(f"""
    v_lshlrev_b32 v42, 16, v163
    v_and_b32 v43, 0xffff0000, v163
    """)
    for c in range(2):
        rbf(e, 40 + c, 40 + c)
        e(f"v_add_f32 v{40+c}, v{40+c}, v{42+c}")
        rbf(e, 40 + c, 40 + c)
        e(f"v_max_f32 v{40+c}, 0, v{40+c}")
        e(f"v_mul_f32 v{40+c}, v{40+c}, v{40+c}")
        rbf(e, 40 + c, 40 + c)
    e(f"""
    s_lshl_b32 s33, s26, 3
    s_add_u32 s33, s33, {L_H1}
    v_mov_b32 v42, s33
    s_mov_b32 exec_lo, 0
    s_mov_b32 exec_hi, 0x80000000
    ds_write_b64 v42, v[40:41]
    s_mov_b64 exec, -1
    s_waitcnt lgkmcnt(0)
    s_barrier
    ds_read_b128 v[40:43], v7 offset:{L_H1}
    ds_read_b128 v[44:47], v7 offset:{L_H1+16}
    ds_read_b128 v[48:51], v7 offset:{L_H1+32}
    ds_read_b128 v[52:55], v7 offset:{L_H1+48}
    ds_read_b64 v[56:57], v7 offset:{L_H1+64}
    s_waitcnt lgkmcnt(0)
    v_mul_f32 v58, v40, v80
    """)
    for r in range(1, 18):
        e(f"v_fmac_f32 v58, v{40+r}, v{80+r}")
    tofix(58, 8, 9, 59)
    e(f"""
    s_add_u32 s33, s35, {WS_ACC2}
    buffer_atomic_add_x2 v[8:9], v12, s[20:23], s33 offen
    """)
    stamp(7)
    e(f"""
    s_cmp_lg_u32 s26, {PW}
    s_cbranch_scc1 K_fin
    s_cmp_ge_u32 s2, {NPOL}
    s_cbranch_scc1 K_end
    s_lshl_b32 s33, s2, {LCP+2}
    v_add_u32 v106, s33, v105
    ds_read_b128 v[60:63], v106 offset:{L_HR}
    """)
    colpoll("K_cp2", WS_ACC2, 3)
    e(f"""
    v_lshlrev_b32 v48, 16, v166
    v_and_b32 v49, 0xffff0000, v166
    v_lshlrev_b32 v50, 16, v167
    v_and_b32 v51, 0xffff0000, v167
    s_waitcnt lgkmcnt(0)
    """)
    for c in range(4):
        e(f"v_add_f32 v{44+c}, v{44+c}, v{48+c}")
        rbf(e, 44 + c, 44 + c)
        e(f"v_add_f32 v{44+c}, v{44+c}, v{60+c}")
    e(f"""
    v_cvt_pk_bf16_f32 v44, v44, v45
    v_cvt_pk_bf16_f32 v45, v46, v47
    v_lshrrev_b32 v106, 1, v105
    s_lshl_b32 s33, s2, {LCP+1}
    s_mov_b32 exec_lo, {0x00010001 if NRA == 16 else 1}
    s_mov_b32 exec_hi, {0x00010001 if NRA == 16 else 1}
    buffer_store_dwordx2 v[44:45], v106, s[96:99], s33 offen
    s_mov_b64 exec, -1
    """)
    if DIAG:
        e(f"""
        s_memrealtime s[8:9]
        s_waitcnt lgkmcnt(0)
        v_mov_b32 v20, s8
        s_lshl_b32 s36, s2, 8
        s_add_u32 s36, s36, {WS_DIAG + 32}
        s_mov_b64 exec, 1
        buffer_store_dword v20, off, s[20:23], s36
        s_mov_b64 exec, -1
        """)
    e("s_branch K_end")
    e.label("K_fin")
    if DIAG:
        e(f"""
        s_cmp_lg_u32 s26, 0
        s_cbranch_scc1 K_end
        s_lshl_b32 s33, s2, 8
        s_add_u32 s33, s33, {WS_DIAG}
        v_lshlrev_b32 v41, 2, v1
        s_mov_b64 exec, 0xff
        buffer_store_dword v39, v41, s[20:23], s33 offen
        """)
    e.label("K_end")
    e("s_endpgm")
    return name


def main():
    ref = open(f"cdna_kernels/{NAME}.s.ref").read().split("\n")
    head = [l for l in ref if l.startswith(";") and "@launch" not in l and "Override launch" not in l and "grid=ceil" not in l]
    out = list(head)
    out.append(f"; @launch kernel=fused_kernel grid=({NWG},1,1) block=({NW*64},1,1) lds={LDS_BYTES}")
    out.append('.amdgcn_target "amdgcn-amd-amdhsa--gfx950"')
    out.append(".text")
    e = E()
    gen(e)
    s = "\n".join(out) + "\n" + e.text()
    s += '.section .rodata,"a"\n.p2align 6\n'
    s += kernel_desc("fused_kernel", NVGA, 102)
    open(OUT, "w").write(s)
    print("wrote", OUT, len(s))


if __name__ == "__main__":
    main()
```

```python
import sys, re, os
sys.path.insert(0, os.path.dirname(os.path.abspath(__file__)))
from gen import (E, srd, rbf, DPP_ROW, row_allreduce, wave_reduce_to_sgpr, div_precise, kernel_header,
                 kernel_desc, ln_wave, ln_mean, ln_finish_stats, ln_apply, NAME, LOG2E, SCALE)

OUT = os.environ.get("OUT", f"cdna_kernels/{NAME}.s")
DIAG = int(os.environ.get("DIAG", "0"))
NREP1 = int(os.environ.get("NREP1", "8"))
NREP2 = int(os.environ.get("NREP2", "8"))
PB = int(os.environ.get("PB", "32"))
NSUB = 4
SLEEP = int(os.environ.get("SLEEP", "1"))
PACE = int(os.environ.get("PACE", "1"))
WPACE = int(os.environ.get("WPACE", "4"))
WDELAY = int(os.environ.get("WDELAY", "0"))
SDELAY = int(os.environ.get("SDELAY", "0"))
FSLEEP = int(os.environ.get("FSLEEP", "3"))
NB = int(os.environ.get("NB", "3"))
POLL_MAX = int(os.environ.get("POLL_MAX", str(0x200000)))
NSTR = 4
NW = 9
HWV = 4
NWW = 4
NT = " nt"
WNT = int(os.environ.get("WNT", "0"))
WN = [" nt" if (WNT >> i) & 1 else "" for i in range(3)]
PK = [int(c) for c in os.environ.get("PK", "1111")]
PSP = int(os.environ.get("PSP", "4"))
PSL = [int(c) for c in os.environ.get("PSL", "1,1,1,1").split(",")]
PD = [int(c) for c in os.environ.get("PD", "0,0,0,28").split(",")]
PMAP = int(os.environ.get("PMAP", "1"))
KMASK = int(os.environ.get("KMASK", "0"))
VMASK = int(os.environ.get("VMASK", "0"))
APOL = os.environ.get("APOL", "").replace("_", " ")
KPOL = os.environ.get("KPOL", "nt").replace("_", " ")
VPOL = os.environ.get("VPOL", "nt").replace("_", " ")
SLOC = 256 - PB
LPB = PB.bit_length() - 1
PTOT = 16 * PB

WS_Q = 0
WS_ML = 65536
WS_CP = 73728
NRA = int(os.environ.get('NRA', '16'))
LRA = NRA.bit_length() - 1
LCP = 8 - LRA
NPOL = 576 >> LCP
RPL = NRA // 16
RST = 5120
WS_ACC1 = WS_CP + 16 * NSUB * 256
WS_ACC2 = WS_ACC1 + NRA * RST
NRH = NRA
HST = 3072
WS_HALL = WS_ACC2 + NRA * RST
WS_O = 524288
assert WS_HALL + NRH * HST <= WS_O
PW = 8
WS_DIAG = 1 << 21
WS_SIZE = 0x40000000
OOB = 0x7fff0000

L_WO = 0
L_W2 = 18432
L_W1 = L_W2 + 21504
L_Q = L_W1 + 20736
L_CNT = L_Q + 512
L_FLAG = L_CNT + 16
L_O16 = L_CNT + 64
L_H = 62848
L_HR = 0
L_H1 = L_H + 2304
L_CMB = 65536
L_MB = L_CMB + 16384
LDS_BYTES = L_MB + 1024

NWG = 256
U = 4
NVG = 168
assert NB <= 3
NVGA = (NVG + 7) // 8 * 8
assert NVGA <= 168


def gen(e):
    name = "fused_kernel"
    kernel_header(e, name)
    Q = 2
    M = 10
    L = 12
    O = 14
    S = 30
    VO = 38
    T = 40
    MX = 56
    AL = 58
    VG = [60, 61, 62, 63]
    KB = [64 + 32 * b for b in range(NB)]
    VB = [80 + 32 * b for b in range(NB)]
    LCA = 160
    LRES = LCA + 1
    CUR = [32, 33, 34, 35]
    NXT = [44, 45, 46, 47]

    def stamp(k):
        if not DIAG:
            return
        e(f"""
        s_memrealtime s[8:9]
        s_waitcnt lgkmcnt(0)
        v_writelane_b32 v39, s8, {k}
        """)

    def sleep():
        if SLEEP:
            e(f"s_sleep {SLEEP}")

    e(f"""
    s_cmp_ge_u32 s2, {NWG}
    s_cbranch_scc1 K_end
    s_load_dwordx4 s[40:43], s[0:1], 0
    s_load_dwordx4 s[44:47], s[0:1], 16
    s_load_dwordx2 s[48:49], s[0:1], 32
    s_load_dwordx4 s[52:55], s[0:1], 48
    s_load_dwordx4 s[56:59], s[0:1], 64
    s_load_dwordx4 s[60:63], s[0:1], 80
    s_load_dwordx2 s[64:65], s[0:1], 96
    v_and_b32 v1, 63, v0
    v_lshrrev_b32 v39, 6, v0
    v_lshlrev_b32 v{VO}, 4, v1
    v_readfirstlane_b32 s26, v39
    s_mov_b32 s29, {SCALE}
    s_mov_b32 s30, {LOG2E}
    s_lshr_b32 s24, s2, 4
    s_and_b32 s25, s2, 15
    s_and_b32 s3, s2, 7
    s_lshr_b32 s4, s2, 3
    s_lshl_b32 s28, s3, 5
    s_add_u32 s28, s28, s4
    s_lshl_b32 s27, s2, 20
    s_lshl_b32 s10, s24, 24
    v_mov_b32 v{LCA}, {L_CNT}
    v_mov_b32 v40, {2*NSTR*NB}
    v_mov_b32 v41, 0
    ds_write_b32 v{LCA}, v40
    ds_write_b32 v{LCA}, v41 offset:16
    s_waitcnt lgkmcnt(0)
    s_barrier
    """)
    if DIAG:
        e("v_mov_b32 v39, 0")
    stamp(0)
    srd(e, 12, 42, 0x10000000)
    srd(e, 16, 44, 0x10000000)
    srd(e, 20, 64, WS_SIZE)
    srd(e, 68, 40, 1152)
    srd(e, 72, 46, 576 * 8192)
    srd(e, 76, 48, 4096 * 1152)
    srd(e, 80, 52, 576 * 9216)
    srd(e, 84, 56, 4608 * 1152)
    srd(e, 88, 54, 9216)
    srd(e, 92, 58, 1152)
    srd(e, 96, 60, 1152)
    srd(e, 4, 62, 256)
    e(f"""
    s_mul_i32 s32, s28, 36
    s_lshl_b32 s33, s26, 2
    s_add_u32 s32, s32, s33
    buffer_load_dword v163, off, s[88:91], s32
    s_cmp_lg_u32 s26, {PW}
    s_cbranch_scc1 K_nopx
    v_lshrrev_b32 v162, {LRA}, v1
    v_lshlrev_b32 v162, 3, v162
    s_lshl_b32 s33, s2, {LCP+1}
    buffer_load_dwordx2 v[164:165], v162, s[68:71], s33 offen
    buffer_load_dwordx2 v[166:167], v162, s[92:95], s33 offen
    """)
    e.label("K_nopx")
    e(f"""
    s_cmp_eq_u32 s26, {HWV}
    s_cbranch_scc1 K_helper
    s_cmp_gt_u32 s26, {HWV}
    s_cbranch_scc1 K_wts
    """)

    def loadK(buf, soff):
        for u in range(U):
            e(f"buffer_load_dwordx4 v[{KB[buf]+4*u}:{KB[buf]+4*u+3}], v{VO}, s[12:15], s{soff} offen offset:{u*1024} {APOL if (KMASK>>u)&1 else KPOL}")

    def loadV(buf, soff):
        for u in range(U):
            e(f"buffer_load_dwordx4 v[{VB[buf]+4*u}:{VB[buf]+4*u+3}], v{VO}, s[16:19], s{soff} offen offset:{u*1024} {APOL if (VMASK>>u)&1 else VPOL}")

    def atom(buf, soff):
        e(f"""
        v_mov_b32 v{VG[buf]}, 1
        s_mov_b64 exec, 1
        buffer_atomic_add v{VG[buf]}, off, s[20:23], s{soff} sc0
        s_mov_b64 exec, -1
        """)

    e(f"""
    s_mul_i32 s3, s24, {NSUB}
    s_add_u32 s11, s26, s3
    s_lshl_b32 s11, s11, 8
    s_add_u32 s11, s11, {WS_CP}
    s_mov_b32 s31, s26
    s_lshl_b32 s36, s26, 12
    s_add_u32 s36, s36, s27
    s_mov_b32 s3, {OOB}
    """)
    for b in range(NB):
        e(f"s_add_u32 s{CUR[b]}, s36, {b*NSTR*4096}")
        e(f"s_add_u32 s{NXT[b]}, s36, {(NB+b)*NSTR*4096}")
    if SDELAY:
        e(f"s_sleep {SDELAY}")
    npw = [0]

    def pacewait():
        k = npw[0]
        npw[0] += 1
        e(f"""
        ds_read_b32 v40, v{LCA} offset:16
        s_waitcnt lgkmcnt(0)
        v_readfirstlane_b32 s36, v40
        s_nop 3
        s_cmp_lg_u32 s36, 0
        s_cbranch_scc1 K_pw{k}
        s_waitcnt vmcnt(0)
        """)
        e.label(f"K_pw{k}")
    for b in range(NB):
        atom(b, 3)
        loadK(b, CUR[b])
        if PACE == 2:
            pacewait()
        loadV(b, CUR[b])
        if PACE and b < NB - 1:
            pacewait()
    if int(os.environ.get("NOQWAIT", "0")):
        e("s_branch K_wqok")
    e.label("K_wq")
    e(f"""
    ds_read_b32 v40, v{LCA} offset:16
    s_waitcnt lgkmcnt(0)
    v_readfirstlane_b32 s36, v40
    s_nop 3
    s_cmp_lg_u32 s36, 0
    s_cbranch_scc1 K_wqok
    s_sleep 1
    s_branch K_wq
    """)
    e.label("K_wqok")
    stamp(1)
    e(f"""
    v_and_b32 v40, 15, v1
    v_lshlrev_b32 v40, 4, v40
    v_add_u32 v40, {L_Q}, v40
    ds_read_b128 v[{Q}:{Q+3}], v40
    ds_read_b128 v[{Q+4}:{Q+7}], v40 offset:256
    v_mov_b32 v{M}, 0xff800000
    v_mov_b32 v{M+1}, 0xff800000
    v_mov_b32 v{L}, 0
    v_mov_b32 v{L+1}, 0
    s_mov_b32 s66, 0
    """)
    for i in range(16):
        e(f"v_mov_b32 v{O+i}, 0")
    e("s_waitcnt lgkmcnt(0)")

    def scores(buf):
        kb = KB[buf]
        for j in range(4):
            for u in range(U):
                for h in range(2):
                    if j == 0:
                        e(f"v_dot2_f32_bf16 v{S+2*u+h}, v{kb+4*u}, v{Q+4*h}, 0")
                    else:
                        e(f"v_dot2c_f32_bf16 v{S+2*u+h}, v{kb+4*u+j}, v{Q+4*h+j}")

    def softmax_part():
        for c in DPP_ROW:
            for k in range(2 * U):
                e(f"v_add_f32_dpp v{S+k}, v{S+k}, v{S+k} {c} row_mask:0xf bank_mask:0xf")
        for u in range(U):
            e(f"v_cvt_pk_bf16_f32 v{T+u}, v{S+2*u}, v{S+2*u+1}")
        for u in range(U):
            e(f"v_lshlrev_b32 v{S+2*u}, 16, v{T+u}")
            e(f"v_and_b32 v{S+2*u+1}, 0xffff0000, v{T+u}")
        for k in range(2 * U):
            e(f"v_mul_f32 v{S+k}, s29, v{S+k}")
        for u in range(U):
            e(f"v_cvt_pk_bf16_f32 v{T+u}, v{S+2*u}, v{S+2*u+1}")
        for u in range(U):
            e(f"v_lshlrev_b32 v{S+2*u}, 16, v{T+u}")
            e(f"v_and_b32 v{S+2*u+1}, 0xffff0000, v{T+u}")
        for h in range(2):
            e(f"v_max3_f32 v{MX+h}, v{M+h}, v{S+h}, v{S+2+h}")
        for h in range(2):
            e(f"v_max3_f32 v{MX+h}, v{MX+h}, v{S+4+h}, v{S+6+h}")
        for h in range(2):
            e(f"v_sub_f32 v{AL+h}, v{M+h}, v{MX+h}")
        for k in range(2 * U):
            e(f"v_sub_f32 v{S+k}, v{S+k}, v{MX+(k&1)}")
        for h in range(2):
            e(f"v_mul_f32 v{AL+h}, s30, v{AL+h}")
        for k in range(2 * U):
            e(f"v_mul_f32 v{S+k}, s30, v{S+k}")
        for h in range(2):
            e(f"v_exp_f32 v{AL+h}, v{AL+h}")
        for k in range(2 * U):
            e(f"v_exp_f32 v{S+k}, v{S+k}")
        for h in range(2):
            e(f"v_mov_b32 v{M+h}, v{MX+h}")
        for h in range(2):
            e(f"v_mul_f32 v{L+h}, v{L+h}, v{AL+h}")
        for h in range(2):
            for i in range(8):
                e(f"v_mul_f32 v{O+8*h+i}, v{O+8*h+i}, v{AL+h}")
        for u in range(U):
            for h in range(2):
                e(f"v_add_f32 v{L+h}, v{L+h}, v{S+2*u+h}")

    def pv(buf):
        vb = VB[buf]
        for u in range(U):
            t = T + 8 * (u & 1)
            for j in range(4):
                e(f"v_lshlrev_b32 v{t+2*j}, 16, v{vb+4*u+j}")
                e(f"v_and_b32 v{t+2*j+1}, 0xffff0000, v{vb+4*u+j}")
            for h in range(2):
                for i in range(8):
                    e(f"v_fmac_f32 v{O+8*h+i}, v{S+2*u+h}, v{t+i}")

    e.label("K_loop")
    for buf in range(NB):
        cur = CUR[buf]
        nxt = NXT[buf]
        e(f"""
        s_cmp_eq_u32 s{cur}, {OOB}
        s_cbranch_scc1 K_done
        v_mov_b32 v{LRES}, 1
        s_mov_b64 exec, 1
        ds_add_rtn_u32 v{LRES}, v{LCA}, v{LRES}
        s_mov_b64 exec, -1
        s_waitcnt vmcnt({9*NB-5})
        v_readfirstlane_b32 s36, v{VG[buf]}
        """)
        scores(buf)
        e(f"""
        s_mul_i32 s36, s36, {NSUB}
        s_add_u32 s36, s36, s31
""")
        if PMAP:
            e(f"""
        s_and_b32 s37, s36, 15
        s_lshl_b32 s37, s37, 20
        s_lshr_b32 s38, s36, 4
        s_add_u32 s38, s38, {SLOC}
""")
        else:
            e(f"""
        s_lshr_b32 s37, s36, {LPB}
        s_lshl_b32 s37, s37, 20
        s_and_b32 s38, s36, {PB-1}
        s_add_u32 s38, s38, {SLOC}
""")
        e(f"""
        s_lshl_b32 s38, s38, 12
        s_add_u32 s37, s37, s38
        s_add_u32 s37, s37, s10
        s_cmp_lt_u32 s36, {PTOT}
        s_cselect_b32 s37, s37, {OOB}
        s_cmp_eq_u32 s{nxt}, -1
        s_cselect_b32 s{cur}, s37, s{nxt}
        s_waitcnt lgkmcnt(0)
        v_readfirstlane_b32 s36, v{LRES}
        s_nop 3
        s_lshl_b32 s37, s36, 12
        s_add_u32 s37, s37, s27
        s_cmp_lt_u32 s36, {SLOC}
        s_cselect_b32 s{nxt}, s37, -1
        s_cselect_b32 s3, {OOB}, s11
        """)
        if DIAG:
            e("s_add_u32 s66, s66, 1")
        atom(buf, 3)
        loadK(buf, cur)
        softmax_part()
        e(f"s_waitcnt vmcnt({9*NB-4})")
        pv(buf)
        loadV(buf, cur)
    e("s_branch K_loop")
    e.label("K_done")
    stamp(2)
    if DIAG:
        e(f"""
        v_mov_b32 v40, s8
        v_mov_b32 v41, s66
        s_lshl_b32 s33, s2, 7
        s_lshl_b32 s34, s26, 3
        s_add_u32 s33, s33, s34
        s_add_u32 s33, s33, {WS_DIAG + 65536}
        s_mov_b64 exec, 1
        buffer_store_dwordx2 v[40:41], off, s[20:23], s33
        s_mov_b64 exec, -1
        """)
    e(f"""
    v_lshrrev_b32 v40, 4, v0
    v_and_b32 v41, 15, v1
    v_lshlrev_b32 v42, 10, v40
    v_lshl_add_u32 v42, v41, 5, v42
    v_add_u32 v42, {L_CMB}, v42
    ds_write_b128 v42, v[{O}:{O+3}]
    ds_write_b128 v42, v[{O+4}:{O+7}] offset:16
    ds_write_b128 v42, v[{O+8}:{O+11}] offset:512
    ds_write_b128 v42, v[{O+12}:{O+15}] offset:528
    v_lshlrev_b32 v43, 2, v40
    v_add_u32 v43, {L_MB}, v43
    ds_write_b32 v43, v{M}
    ds_write_b32 v43, v{M+1} offset:256
    ds_write_b32 v43, v{L} offset:512
    ds_write_b32 v43, v{L+1} offset:768
    s_branch K_tail
    """)

    e.label("K_wts")
    e(f"""
    s_sub_u32 s31, s26, {HWV+1}
    s_cmp_lg_u32 s25, 0
    s_cbranch_scc1 K_noinit
    s_cmp_lg_u32 s31, 0
    s_cbranch_scc1 K_noinit
    v_mov_b32 v40, -1
    v_mov_b32 v41, -1
    v_mov_b32 v42, -1
    v_mov_b32 v43, -1
    v_mov_b32 v44, 0
    v_mov_b32 v45, 0
    v_mov_b32 v46, 0
    v_mov_b32 v47, 0
    s_lshl_b32 s32, s24, 12
    s_mul_i32 s33, s24, {NSUB*256}
    s_add_u32 s33, s33, {WS_CP}
    buffer_load_dword v48, off, s[4:7], 0 offset:192
    """)
    for i in range(4):
        e(f"buffer_store_dwordx4 v[40:43], v{VO}, s[20:23], s32 offen offset:{WS_Q+i*1024} sc0 sc1")
    e(f"buffer_store_dwordx4 v[44:47], v{VO}, s[20:23], s33 offen sc0 sc1")
    e(f"""
    s_mul_i32 s33, s24, {RST*RPL}
    s_add_u32 s33, s33, {WS_ACC1}
    s_add_u32 s35, s33, {NRA*RST}
    s_mul_i32 s34, s24, {HST*RPL}
    s_add_u32 s34, s34, {WS_HALL}
    s_lshl_b32 s32, s24, 2
    v_mov_b32 v49, 1
    s_waitcnt vmcnt(0)
    s_mov_b64 exec, 1
    buffer_store_dword v49, off, s[4:7], s32 sc0 sc1
    s_mov_b64 exec, -1
    """)
    for sr, n, vr in ((33, RST * RPL // 1024, 44), (35, RST * RPL // 1024, 44), (34, HST * RPL // 1024, 40)):
        for i in range(n):
            e(f"buffer_store_dwordx4 v[{vr}:{vr+3}], v{VO}, s[20:23], s{sr} offen offset:{(i&3)*1024} sc0 sc1")
            if (i & 3) == 3:
                e(f"s_add_u32 s{sr}, s{sr}, 4096")
    e(f"""
    s_waitcnt vmcnt(0)
    s_mov_b64 exec, 1
    buffer_store_dword v49, off, s[4:7], s32 offset:128 sc0 sc1
    s_mov_b64 exec, -1
    """)
    e.label("K_noinit")
    if WDELAY:
        e(f"s_sleep {WDELAY}")
    cnt = [0]

    def wpace(n):
        cnt[0] += n
        if WPACE and cnt[0] >= WPACE * 4:
            e("s_waitcnt vmcnt(0)")
            cnt[0] = 0

    def wtasks(lbl, ntask, srdn, base_code, ldsbase):
        e(base_code)
        e(f"""
        s_lshl_b32 s37, s31, 10
        s_add_u32 s36, s36, s37
        s_add_u32 s38, s37, {ldsbase}
        """)
        k = 0
        while k * NWW < ntask:
            if (k + 1) * NWW > ntask:
                e(f"s_cmp_ge_u32 s31, {ntask - k*NWW}")
                e(f"s_cbranch_scc1 {lbl}")
            e(f"""
            s_mov_b32 m0, s38
            s_nop 0
            buffer_load_dwordx4 v{VO}, s[{srdn}:{srdn+3}], s36 offen{WN[1]} lds
            s_add_u32 s36, s36, {NWW*1024}
            s_add_u32 s38, s38, {NWW*1024}
            """)
            wpace(4)
            k += 1
        e.label(lbl)
    wtasks("K_wo_done", 18, 76, f"""
    s_lshl_b32 s36, s24, 4
    s_add_u32 s36, s36, s25
    s_mul_i32 s36, s36, {16*1152}
    """, L_WO)
    wtasks("K_w2_done", 21, 84, "s_mul_i32 s36, s28, 20736", L_W2)
    e(f"""
    s_mul_i32 s36, s28, 36
    s_lshl_b32 s37, s31, 8
    s_add_u32 s38, s37, {L_W1}
    s_movk_i32 s39, 9216
    v_subrev_u32 v30, {(HWV+1)*64}, v0
    """)
    k = 0
    while k * NWW < 81:
        if (k + 1) * NWW > 81:
            e(f"s_cmp_ge_u32 s31, {81 - k*NWW}")
            e("s_cbranch_scc1 K_w1_done")
        e(f"""
        v_add_u32 v31, {k*NWW*64}, v30
        v_mul_u32_u24 v32, 7282, v31
        v_lshrrev_b32 v32, 16, v32
        v_mul_u32_u24 v33, 9, v32
        v_sub_u32 v33, v31, v33
        v_mul_u32_u24 v32, s39, v32
        v_lshl_add_u32 v32, v33, 2, v32
        s_mov_b32 m0, s38
        s_add_u32 s38, s38, {NWW*256}
        buffer_load_dword v32, s[80:83], s36 offen{WN[2]} lds
        """)
        wpace(2)
        k += 1
    e.label("K_w1_done")
    e("s_branch K_tail")

    e.label("K_helper")
    X = 14
    WR = 64
    LNV = 40
    e("v_lshlrev_b32 v40, 1, v1")
    for i in range(9):
        e(f"buffer_load_ushort v{X+i}, v40, s[68:71], 0 offen offset:{i*128}")
    e(f"""
    v_lshrrev_b32 v41, 3, v1
    v_mul_u32_u24 v40, {18*8192}, v41
    v_and_b32 v42, 7, v1
    v_lshl_add_u32 v40, v42, 4, v40
    s_lshr_b32 s33, s25, 2
    s_and_b32 s34, s25, 3
    s_mul_i32 s32, s33, {144*8192}
    s_lshl_b32 s35, s24, 9
    s_add_u32 s32, s32, s35
    s_lshl_b32 s35, s34, 7
    s_add_u32 s32, s32, s35
    """)
    for i in range(18):
        e(f"buffer_load_dwordx4 v[{WR+4*i}:{WR+4*i+3}], v40, s[72:75], s32 offen{WN[0]}")
        if i < 17:
            e("s_add_u32 s32, s32, 0x2000")
    e(f"""
    v_mul_u32_u24 v34, 72, v41
    s_mul_i32 s35, s33, 576
    s_add_u32 s35, s35, {L_H}
    v_add_u32 v34, s35, v34
    """)
    e(f"""
    v_mov_b32 v40, -1
    v_mov_b32 v41, -1
    v_lshrrev_b32 v42, 4, v1
    v_lshlrev_b32 v42, 10, v42
    v_and_b32 v43, 15, v1
    v_lshl_add_u32 v42, v43, 2, v42
    s_lshl_b32 s36, s24, 14
    s_lshl_b32 s37, s25, 6
    s_add_u32 s36, s36, s37
    s_add_u32 s36, s36, {WS_O}
    buffer_store_dword v40, v42, s[20:23], s36 offen sc0 sc1
    s_add_u32 s36, s36, 4096
    buffer_store_dword v40, v42, s[20:23], s36 offen sc0 sc1
    s_add_u32 s36, s36, 4096
    buffer_store_dword v40, v42, s[20:23], s36 offen sc0 sc1
    s_add_u32 s36, s36, 4096
    buffer_store_dword v40, v42, s[20:23], s36 offen sc0 sc1
    s_lshl_b32 s36, s24, 8
    s_lshl_b32 s37, s25, 3
    s_add_u32 s36, s36, s37
    s_add_u32 s36, s36, {WS_ML}
    s_mov_b64 exec, 1
    buffer_store_dwordx2 v[40:41], off, s[20:23], s36 sc0 sc1
    buffer_store_dwordx2 v[40:41], off, s[20:23], s36 offset:128 sc0 sc1
    s_mov_b64 exec, -1
    s_lshl_b32 s66, s24, 2
    buffer_load_dword v37, off, s[4:7], 0 offset:192
    s_waitcnt vmcnt(25)
    """)
    stamp(1)
    ln_wave(e, X=X, LN=X, T=23, S=36)
    e("v_lshlrev_b32 v40, 2, v1")
    for i in range(9):
        e(f"ds_write_b32 v40, v{X+i} offset:{L_H+i*256}")
    e("s_waitcnt lgkmcnt(0)")
    for i in range(9):
        e(f"ds_read_b64 v[{LNV+2*i}:{LNV+2*i+1}], v34 offset:{i*8}")
    ACC = list(range(2, 10))
    for c in range(8):
        e(f"v_mov_b32 v{ACC[c]}, 0")
    e("s_waitcnt vmcnt(0) lgkmcnt(0)")
    stamp(2)
    e("buffer_load_dword v36, off, s[4:7], s66 sc0 sc1")
    for i in range(18):
        for j in range(4):
            w = WR + 4 * i + j
            e(f"v_lshlrev_b32 v{10+(j&1)*2}, 16, v{w}")
            e(f"v_and_b32 v{11+(j&1)*2}, 0xffff0000, v{w}")
            e(f"v_fmac_f32 v{ACC[2*j]}, v{LNV+i}, v{10+(j&1)*2}")
            e(f"v_fmac_f32 v{ACC[2*j+1]}, v{LNV+i}, v{11+(j&1)*2}")
    e("s_nop 1")
    for c in range(4):
        e(f"v_permlane32_swap_b32 v{ACC[c]}, v{ACC[c+4]}")
    e("s_nop 1")
    for c in range(4):
        e(f"v_add_f32 v{ACC[c]}, v{ACC[c]}, v{ACC[c+4]}")
    e("s_nop 1")
    for c in range(2):
        e(f"v_permlane16_swap_b32 v{ACC[c]}, v{ACC[c+2]}")
    e("s_nop 1")
    for c in range(2):
        e(f"v_add_f32 v{ACC[c]}, v{ACC[c]}, v{ACC[c+2]}")
    e("s_nop 1")
    for c in range(2):
        e(f"v_add_f32_dpp v{ACC[c]}, v{ACC[c]}, v{ACC[c]} row_ror:8 row_mask:0xf bank_mask:0xf")
    e(f"""
    v_and_b32 v40, 7, v1
    v_lshlrev_b32 v40, 5, v40
    v_lshrrev_b32 v41, 4, v1
    v_lshl_add_u32 v40, v41, 3, v40
    v_and_b32 v43, 8, v1
    s_lshl_b32 s32, s24, 12
    s_lshl_b32 s35, s33, 10
    s_add_u32 s35, s35, s32
    s_lshl_b32 s34, s34, 8
    s_add_u32 s35, s35, s34
    s_mov_b32 s39, 0
    """)
    e.label("K_flagchk")
    e(f"""
    s_waitcnt vmcnt(0)
    v_readfirstlane_b32 s36, v36
    s_add_u32 s39, s39, 1
    s_nop 3
    s_cmp_lg_u32 s36, 0
    s_cbranch_scc1 K_flagok
    s_cmp_ge_u32 s39, {POLL_MAX}
    s_cbranch_scc1 K_flagok
    s_sleep {FSLEEP}
    buffer_load_dword v36, off, s[4:7], s66 sc0 sc1
    s_branch K_flagchk
    """)
    e.label("K_flagok")
    e(f"""
    v_cmp_eq_u32 vcc, 0, v43
    s_and_saveexec_b64 s[36:37], vcc
    buffer_store_dwordx2 v[{ACC[0]}:{ACC[1]}], v40, s[20:23], s35 offen offset:{WS_Q} sc0 sc1
    s_mov_b64 exec, -1
    s_mov_b32 s39, 0
    """)
    stamp(3)
    e.label("K_qpoll")
    for r in range(4):
        e(f"buffer_load_dwordx4 v[{44+4*r}:{47+4*r}], v{VO}, s[20:23], s32 offen offset:{WS_Q+r*1024} sc0 sc1")
    e("s_waitcnt vmcnt(0)")
    e("v_max3_u32 v60, v44, v45, v46")
    for r in range(47, 59, 2):
        e(f"v_max3_u32 v60, v60, v{r}, v{r+1}")
    e(f"""
    v_max_u32 v60, v60, v59
    v_cmp_ne_u32 vcc, -1, v60
    s_add_u32 s39, s39, 1
    s_nop 3
    s_cmp_eq_u64 vcc, exec
    s_cbranch_scc1 K_qok
    s_cmp_ge_u32 s39, {POLL_MAX}
    s_cbranch_scc1 K_qok
    """)
    sleep()
    e("s_branch K_qpoll")
    e.label("K_qok")
    for c in range(4):
        e(f"v_add_f32 v{44+c}, v{44+c}, v{48+c}")
        e(f"v_add_f32 v{52+c}, v{52+c}, v{56+c}")
    for c in range(4):
        e(f"v_add_f32 v{44+c}, v{44+c}, v{52+c}")
    e(f"""
    v_cvt_pk_bf16_f32 v40, v44, v45
    v_cvt_pk_bf16_f32 v41, v46, v47
    v_lshlrev_b32 v42, 3, v1
    v_mov_b32 v43, 1
    ds_write_b64 v42, v[40:41] offset:{L_Q}
    s_waitcnt lgkmcnt(0)
    ds_write_b32 v{LCA}, v43 offset:16
    v_lshlrev_b32 v42, 2, v1
    s_mov_b32 s39, 0
    """)
    stamp(4)
    e("s_mov_b64 exec, 0xffff")
    e("s_sleep 100")
    e.label("K_fbpoll")
    e(f"""
    buffer_load_dword v44, v42, s[4:7], 0 offen offset:128 sc0 sc1
    s_waitcnt vmcnt(0)
    v_cmp_ne_u32 vcc, 0, v44
    s_add_u32 s39, s39, 1
    s_nop 3
    s_cmp_eq_u64 vcc, exec
    s_cbranch_scc1 K_fbok
    s_cmp_ge_u32 s39, {POLL_MAX}
    s_cbranch_scc1 K_fbok
    s_sleep 32
    s_branch K_fbpoll
    """)
    e.label("K_fbok")
    e("s_mov_b64 exec, -1")
    stamp(5)
    if DIAG:
        e(f"""
        s_lshl_b32 s36, s2, 8
        s_add_u32 s36, s36, {WS_DIAG + 131072}
        v_lshlrev_b32 v41, 2, v1
        buffer_store_dword v39, v41, s[20:23], s36 offen
        """)

    def pipepoll(lbl, idx, n, issue, check, fin):
        K = PK[idx]
        e("s_mov_b32 s39, 0")
        if PD[idx]:
            e(f"s_sleep {PD[idx]}")
        for i in range(K):
            issue(i)
            if i < K - 1 and PSP:
                e(f"s_sleep {PSP}")
        e.label(lbl)
        for i in range(K):
            e(f"s_waitcnt vmcnt({n*(K-1)})")
            check(i)
            e(f"""
            s_nop 3
            s_cmp_eq_u64 vcc, exec
            s_cbranch_scc1 {lbl}_f{i}
            """)
            if K == 1 and PSL[idx]:
                e(f"s_sleep {PSL[idx]}")
            issue(i)
        e(f"""
        s_add_u32 s39, s39, 1
        s_cmp_lt_u32 s39, {POLL_MAX}
        s_cbranch_scc1 {lbl}
        s_waitcnt vmcnt(0)
        """)
        for i in range(K):
            e.label(f"{lbl}_f{i}")
            fin(i)
            if i < K - 1:
                e(f"s_branch {lbl}_d")
        e.label(f"{lbl}_d")

    e.label("K_tail")
    e(f"""
    v_lshlrev_b32 v5, 1, v0
    v_lshlrev_b32 v6, 2, v0
    v_mov_b32 v7, 0
    v_and_b32 v13, {NRA-1}, v1
    v_mul_u32_u24 v104, {HST}, v13
    v_mul_u32_u24 v13, {RST}, v13
    v_lshrrev_b32 v105, {LRA}, v1
    v_lshl_add_u32 v13, v105, 5, v13
    v_lshlrev_b32 v105, 4, v105
    v_add_u32 v104, v104, v105
    s_waitcnt vmcnt(0) lgkmcnt(0)
    s_barrier
    """)
    stamp(3 if True else 0)
    e(f"""
    s_cmp_ge_u32 s26, 4
    s_cbranch_scc1 K_nocomb
    s_lshr_b32 s31, s26, 1
    s_and_b32 s32, s26, 1
    s_lshl_b32 s33, s31, 8
    v_lshlrev_b32 v43, 2, v1
    v_add_u32 v43, s33, v43
    v_add_u32 v43, {L_MB}, v43
    ds_read_b32 v44, v43
    ds_read_b32 v45, v43 offset:512
    s_lshl_b32 s33, s31, 9
    s_lshl_b32 s34, s32, 8
    s_add_u32 s33, s33, s34
    s_add_u32 s33, s33, {L_CMB}
    v_lshlrev_b32 v46, 2, v1
    v_add_u32 v46, s33, v46
    """)
    NG = 4 * NSTR
    for g in range(NG):
        e(f"ds_read_b32 v{64+g}, v46 offset:{g*1024}")
    e("s_waitcnt lgkmcnt(0)")
    e(f"""
    v_cmp_gt_u32 vcc, {NG}, v1
    v_mov_b32 v47, 0xff800000
    v_cndmask_b32 v44, v47, v44, vcc
    v_cndmask_b32 v45, 0, v45, vcc
    v_mov_b32 v47, v44
    """)
    wave_reduce_to_sgpr(e, "v_max_f32", 47, 36)
    e(f"""
    v_subrev_f32 v47, s36, v44
    v_mul_f32 v47, s30, v47
    v_exp_f32 v47, v47
    s_nop 0
    v_mul_f32 v48, v47, v45
    """)
    wave_reduce_to_sgpr(e, "v_add_f32", 48, 37)
    e("v_mov_b32 v49, 0")
    for g in range(NG):
        e(f"v_readlane_b32 s{40+(g&3)}, v47, {g}")
        if (g & 3) == 3:
            e("s_nop 1")
            for k in range(4):
                e(f"v_fmac_f32 v49, s{40+k}, v{64+g-3+k}")
    e(f"""
    s_lshl_b32 s33, s24, 1
    s_add_u32 s33, s33, s31
    s_lshl_b32 s34, s33, 13
    s_lshl_b32 s35, s32, 12
    s_add_u32 s34, s34, s35
    s_lshl_b32 s35, s25, 6
    s_add_u32 s34, s34, s35
    s_add_u32 s34, s34, {WS_O}
    v_lshrrev_b32 v46, 4, v1
    v_lshlrev_b32 v46, 10, v46
    v_and_b32 v50, 15, v1
    v_lshl_add_u32 v46, v50, 2, v46
    buffer_store_dword v49, v46, s[20:23], s34 offen sc0 sc1
    s_cmp_lg_u32 s32, 0
    s_cbranch_scc1 K_nocomb
    s_lshl_b32 s34, s33, 4
    s_add_u32 s34, s34, s25
    s_lshl_b32 s34, s34, 3
    s_add_u32 s34, s34, {WS_ML}
    v_mov_b32 v50, s36
    v_mov_b32 v51, s37
    s_mov_b64 exec, 1
    buffer_store_dwordx2 v[50:51], v7, s[20:23], s34 offen sc0 sc1
    s_mov_b64 exec, -1
    """)
    e.label("K_nocomb")
    for r in range(16):
        e(f"v_mov_b32 v{64+r}, 0")
    for r in range(16):
        e(f"ds_read_u16_d16_hi v{64+r}, v5 offset:{L_WO+r*1152}")
    e(f"""
    s_cmp_lg_u32 s26, 4
    s_cbranch_scc1 K_noo16
    s_lshl_b32 s33, s24, 1
    s_lshr_b32 s34, s25, 3
    s_add_u32 s33, s33, s34
    s_lshl_b32 s32, s33, 7
    s_add_u32 s32, s32, {WS_ML}
    v_lshrrev_b32 v40, 2, v1
    v_lshlrev_b32 v40, 3, v40
    s_lshl_b32 s33, s33, 3
    s_and_b32 s34, s25, 7
    s_add_u32 s33, s33, s34
    s_lshl_b32 s33, s33, 10
    s_add_u32 s33, s33, {WS_O}
    """)

    def p1_issue(i):
        b = 108 + 8 * i
        e(f"""
        buffer_load_dwordx2 v[{b}:{b+1}], v40, s[20:23], s32 offen sc0 sc1
        buffer_load_dwordx4 v[{b+2}:{b+5}], v{VO}, s[20:23], s33 offen sc0 sc1
        """)

    def p1_check(i):
        b = 108 + 8 * i
        e(f"""
        v_max3_u32 v52, v{b}, v{b+1}, v{b+2}
        v_max3_u32 v52, v52, v{b+3}, v{b+4}
        v_max_u32 v52, v52, v{b+5}
        v_cmp_ne_u32 vcc, -1, v52
        """)

    def p1_fin(i):
        b = 108 + 8 * i
        e(f"v_mov_b32 v44, v{b}")
        e(f"v_mov_b32 v45, v{b+1}")
        for c in range(4):
            e(f"v_mov_b32 v{48+c}, v{b+2+c}")
    pipepoll("K_poll1", 0, 2, p1_issue, p1_check, p1_fin)
    e("v_mov_b32 v47, v44")
    wave_reduce_to_sgpr(e, "v_max_f32", 47, 36)
    e(f"""
    v_subrev_f32 v47, s36, v44
    v_mul_f32 v47, s30, v47
    v_exp_f32 v47, v47
    s_nop 0
    v_mul_f32 v52, v47, v45
    v_mul_f32 v52, 0.25, v52
    """)
    wave_reduce_to_sgpr(e, "v_add_f32", 52, 37)
    for c in range(4):
        e(f"v_mul_f32 v{48+c}, v{48+c}, v47")
    for d in ["row_ror:4", "row_ror:8"]:
        e("s_nop 1")
        for c in range(4):
            e(f"v_add_f32_dpp v{48+c}, v{48+c}, v{48+c} {d} row_mask:0xf bank_mask:0xf")
    for sw in ["v_permlane16_swap_b32", "v_permlane32_swap_b32"]:
        for c in range(4):
            e(f"v_mov_b32 v{52+c}, v{48+c}")
        e("s_nop 1")
        for c in range(4):
            e(f"{sw} v{48+c}, v{52+c}")
        e("s_nop 1")
        for c in range(4):
            e(f"v_add_f32 v{48+c}, v{48+c}, v{52+c}")
    e("v_mov_b32 v56, s37")
    for c in range(4):
        div_precise(e, 52 + c, 48 + c, 56, 57, 58)
        rbf(e, 52 + c, 52 + c)
    e(f"""
    v_add_u32 v40, {L_O16}, v{VO}
    s_mov_b64 exec, 15
    ds_write_b128 v40, v[52:55]
    s_mov_b64 exec, -1
    """)
    e.label("K_noo16")
    e(f"""
    s_waitcnt lgkmcnt(0)
    s_barrier
    ds_read_b128 v[40:43], v7 offset:{L_O16}
    ds_read_b128 v[44:47], v7 offset:{L_O16+16}
    ds_read_b128 v[48:51], v7 offset:{L_O16+32}
    ds_read_b128 v[52:55], v7 offset:{L_O16+48}
    s_waitcnt lgkmcnt(0)
    v_mul_f32 v58, v40, v64
    """)
    for r in range(1, 16):
        e(f"v_fmac_f32 v58, v{40+r}, v{64+r}")

    def tofix(v, lo, hi, t):
        e(f"""
        v_mul_f32 v{t}, 0x43800000, v{v}
        v_floor_f32 v{hi}, v{t}
        v_sub_f32 v{t}, v{t}, v{hi}
        v_cvt_i32_f32 v{hi}, v{hi}
        v_mul_f32 v{t}, 0x4f800000, v{t}
        v_cvt_u32_f32 v{lo}, v{t}
        v_and_b32 v{lo}, 0xfffffe00, v{lo}
        v_or_b32 v{lo}, 1, v{lo}
        """)

    def colpoll(lbl, base, K):
        e(f"""
        s_lshl_b32 s33, s2, {LCP+3}
        s_add_u32 s33, s33, {base}
        v_mov_b32 v56, 0x2b800000
        """)

        def issue(i):
            b = 108 + 8 * i
            e(f"""
            buffer_load_dwordx4 v[{b}:{b+3}], v13, s[20:23], s33 offen sc0 sc1
            buffer_load_dwordx4 v[{b+4}:{b+7}], v13, s[20:23], s33 offen offset:16 sc0 sc1
            """)

        def check(i):
            b = 108 + 8 * i
            e(f"""
            v_and_b32 v52, v{b}, v{b+2}
            v_and_b32 v53, v{b+4}, v{b+6}
            v_or_b32 v54, v{b}, v{b+2}
            v_or3_b32 v54, v54, v{b+4}, v{b+6}
            v_and_b32 v52, v52, v53
            v_and_b32 v52, 0x1ff, v52
            v_and_b32 v54, 0x1ff, v54
            v_lshl_or_b32 v52, v54, 16, v52
            v_cmp_eq_u32 vcc, {(NWG//NRA) * 0x10001}, v52
            """)

        def fin(i):
            b = 108 + 8 * i
            for c in range(4):
                e(f"""
                v_and_b32 v{44+2*c}, 0xfffffe00, v{b+2*c}
                v_cvt_f32_i32 v{45+2*c}, v{b+1+2*c}
                """)
        pipepoll(lbl, K, 2, issue, check, fin)
        for c in range(4):
            e(f"""
            v_cvt_f32_u32 v{44+2*c}, v{44+2*c}
            v_mul_f32 v{45+2*c}, 0x3b800000, v{45+2*c}
            """)
        for c in range(4):
            e(f"v_fma_f32 v{52+c}, v{44+2*c}, v56, v{45+2*c}")
        for d in DPP_ROW:
            e("s_nop 0")
            for c in range(4):
                e(f"v_add_f32_dpp v{52+c}, v{52+c}, v{52+c} {d} row_mask:0xf bank_mask:0xf")
        if NRA == 32:
            for c in range(4):
                e(f"v_mov_b32 v{44+c}, v{52+c}")
            e("s_nop 1")
            for c in range(4):
                e(f"v_permlane16_swap_b32 v{52+c}, v{44+c}")
            e("s_nop 1")
            for c in range(4):
                e(f"v_add_f32 v{52+c}, v{52+c}, v{44+c}")
        for c in range(4):
            rbf(e, 44 + c, 52 + c)

    tofix(58, 8, 9, 59)
    e(f"""
    v_lshlrev_b32 v12, 3, v0
    s_and_b32 s35, s2, {NRA-1}
    s_mul_i32 s35, s35, {RST}
    s_add_u32 s33, s35, {WS_ACC1}
    buffer_atomic_add_x2 v[8:9], v12, s[20:23], s33 offen
    """)
    stamp(4)
    e(f"""
    v_mul_u32_u24 v41, 36, v1
    s_lshl_b32 s33, s26, 2
    s_add_u32 s33, s33, {L_W1}
    v_add_u32 v41, s33, v41
    """)
    for i in range(9):
        e(f"ds_read_b32 v{64+i}, v41 offset:{i*64*36}")
    for r in range(18):
        e(f"v_mov_b32 v{80+r}, 0")
    for r in range(18):
        e(f"ds_read_u16_d16_hi v{80+r}, v5 offset:{L_W2+r*1152}")
    e(f"""
    s_cmp_lg_u32 s26, {PW}
    s_cbranch_scc1 K_nopub
    s_cmp_ge_u32 s2, {NPOL}
    s_cbranch_scc1 K_nopub
    """)
    colpoll("K_cp1", WS_ACC1, 1)
    e(f"""
    v_lshlrev_b32 v48, 16, v164
    v_and_b32 v49, 0xffff0000, v164
    v_lshlrev_b32 v50, 16, v165
    v_and_b32 v51, 0xffff0000, v165
    """)
    for c in range(4):
        e(f"v_add_f32 v{44+c}, v{44+c}, v{48+c}")
        rbf(e, 44 + c, 44 + c)
    e(f"""
    s_lshl_b32 s33, s2, {LCP+2}
    s_add_u32 s33, s33, {WS_HALL}
    buffer_store_dwordx4 v[44:47], v104, s[20:23], s33 offen sc0 sc1
    """)
    e.label("K_nopub")
    stamp(5)
    XH = 14
    e(f"""
    s_cmp_lg_u32 s26, 4
    s_cbranch_scc1 K_noln
    s_and_b32 s33, s2, {NRH-1}
    s_mul_i32 s33, s33, {HST}
    s_add_u32 s33, s33, {WS_HALL}
    v_lshlrev_b32 v41, 2, v1
    """)

    def p2_issue(i):
        b = 130 + 10 * i
        e(f"""
        buffer_load_dwordx4 v[{b}:{b+3}], v{VO}, s[20:23], s33 offen sc0 sc1
        buffer_load_dwordx4 v[{b+4}:{b+7}], v{VO}, s[20:23], s33 offen offset:1024 sc0 sc1
        buffer_load_dword v{b+8}, v41, s[20:23], s33 offen offset:2048 sc0 sc1
        """)

    def p2_check(i):
        b = 130 + 10 * i
        e(f"""
        v_max3_u32 v52, v{b}, v{b+1}, v{b+2}
        v_max3_u32 v52, v52, v{b+3}, v{b+4}
        v_max3_u32 v52, v52, v{b+5}, v{b+6}
        v_max3_u32 v52, v52, v{b+7}, v{b+8}
        v_cmp_ne_u32 vcc, -1, v52
        """)

    def p2_fin(i):
        b = 130 + 10 * i
        for c in range(9):
            e(f"v_mov_b32 v{XH+c}, v{b+c}")
    pipepoll("K_poll2", 2, 3, p2_issue, p2_check, p2_fin)
    e(f"""
    ds_write_b128 v{VO}, v[{XH}:{XH+3}] offset:{L_HR}
    ds_write_b128 v{VO}, v[{XH+4}:{XH+7}] offset:{L_HR+1024}
    ds_write_b32 v41, v{XH+8} offset:{L_HR+2048}
    """)
    TT = 23
    e(f"v_add_f32 v{TT}, v{XH}, v{XH+1}")
    for i in range(2, 9):
        e(f"v_add_f32 v{TT}, v{TT}, v{XH+i}")
    wave_reduce_to_sgpr(e, "v_add_f32", TT, 36)
    ln_mean(e, TT, 36)
    e(f"v_sub_f32 v{TT+1}, v{XH}, v{TT}")
    e(f"v_mul_f32 v{TT+2}, v{TT+1}, v{TT+1}")
    for i in range(1, 9):
        e(f"v_sub_f32 v{TT+1}, v{XH+i}, v{TT}")
        e(f"v_fmac_f32 v{TT+2}, v{TT+1}, v{TT+1}")
    wave_reduce_to_sgpr(e, "v_add_f32", TT + 2, 36)
    ln_finish_stats(e, TT, 36)
    for i in range(9):
        ln_apply(e, XH + i, XH + i, TT)
    e(f"""
    ds_write_b128 v{VO}, v[{XH}:{XH+3}] offset:{L_H}
    ds_write_b128 v{VO}, v[{XH+4}:{XH+7}] offset:{L_H+1024}
    ds_write_b32 v41, v{XH+8} offset:{L_H+2048}
    """)
    e.label("K_noln")
    e(f"""
    v_lshlrev_b32 v41, 2, v1
    s_waitcnt lgkmcnt(0)
    s_barrier
    """)
    stamp(6)
    for i in range(9):
        e(f"ds_read_b32 v{XH+i}, v41 offset:{L_H+i*256}")
    e("s_waitcnt lgkmcnt(0)")
    for i in range(9):
        e(f"v_lshlrev_b32 v42, 16, v{64+i}")
        e(f"v_and_b32 v43, 0xffff0000, v{64+i}")
        if i == 0:
            e(f"v_mul_f32 v40, v{XH+i}, v42")
            e(f"v_mul_f32 v41, v{XH+i}, v43")
        else:
            e(f"v_fmac_f32 v40, v{XH+i}, v42")
            e(f"v_fmac_f32 v41, v{XH+i}, v43")
    for c in DPP_ROW:
        e("s_nop 0")
        for k in range(2):
            e(f"v_add_f32_dpp v{40+k}, v{40+k}, v{40+k} {c} row_mask:0xf bank_mask:0xf")
    e("s_nop 0")
    for k in range(2):
        e(f"v_add_f32_dpp v{40+k}, v{40+k}, v{40+k} row_bcast:15 row_mask:0xa bank_mask:0xf")
    e("s_nop 0")
    for k in range(2):
        e(f"v_add_f32_dpp v{40+k}, v{40+k}, v{40+k} row_bcast:31 row_mask:0xc bank_mask:0xf")
    e(f"""
    v_lshlrev_b32 v42, 16, v163
    v_and_b32 v43, 0xffff0000, v163
    """)
    for c in range(2):
        rbf(e, 40 + c, 40 + c)
        e(f"v_add_f32 v{40+c}, v{40+c}, v{42+c}")
        rbf(e, 40 + c, 40 + c)
        e(f"v_max_f32 v{40+c}, 0, v{40+c}")
        e(f"v_mul_f32 v{40+c}, v{40+c}, v{40+c}")
        rbf(e, 40 + c, 40 + c)
    e(f"""
    s_lshl_b32 s33, s26, 3
    s_add_u32 s33, s33, {L_H1}
    v_mov_b32 v42, s33
    s_mov_b32 exec_lo, 0
    s_mov_b32 exec_hi, 0x80000000
    ds_write_b64 v42, v[40:41]
    s_mov_b64 exec, -1
    s_waitcnt lgkmcnt(0)
    s_barrier
    ds_read_b128 v[40:43], v7 offset:{L_H1}
    ds_read_b128 v[44:47], v7 offset:{L_H1+16}
    ds_read_b128 v[48:51], v7 offset:{L_H1+32}
    ds_read_b128 v[52:55], v7 offset:{L_H1+48}
    ds_read_b64 v[56:57], v7 offset:{L_H1+64}
    s_waitcnt lgkmcnt(0)
    v_mul_f32 v58, v40, v80
    """)
    for r in range(1, 18):
        e(f"v_fmac_f32 v58, v{40+r}, v{80+r}")
    tofix(58, 8, 9, 59)
    e(f"""
    s_add_u32 s33, s35, {WS_ACC2}
    buffer_atomic_add_x2 v[8:9], v12, s[20:23], s33 offen
    """)
    stamp(7)
    e(f"""
    s_cmp_lg_u32 s26, {PW}
    s_cbranch_scc1 K_fin
    s_cmp_ge_u32 s2, {NPOL}
    s_cbranch_scc1 K_end
    s_lshl_b32 s33, s2, {LCP+2}
    v_add_u32 v106, s33, v105
    ds_read_b128 v[60:63], v106 offset:{L_HR}
    """)
    colpoll("K_cp2", WS_ACC2, 3)
    e(f"""
    v_lshlrev_b32 v48, 16, v166
    v_and_b32 v49, 0xffff0000, v166
    v_lshlrev_b32 v50, 16, v167
    v_and_b32 v51, 0xffff0000, v167
    s_waitcnt lgkmcnt(0)
    """)
    for c in range(4):
        e(f"v_add_f32 v{44+c}, v{44+c}, v{48+c}")
        rbf(e, 44 + c, 44 + c)
        e(f"v_add_f32 v{44+c}, v{44+c}, v{60+c}")
    e(f"""
    v_cvt_pk_bf16_f32 v44, v44, v45
    v_cvt_pk_bf16_f32 v45, v46, v47
    v_lshrrev_b32 v106, 1, v105
    s_lshl_b32 s33, s2, {LCP+1}
    s_mov_b32 exec_lo, {0x00010001 if NRA == 16 else 1}
    s_mov_b32 exec_hi, {0x00010001 if NRA == 16 else 1}
    buffer_store_dwordx2 v[44:45], v106, s[96:99], s33 offen
    s_mov_b64 exec, -1
    """)
    if DIAG:
        e(f"""
        s_memrealtime s[8:9]
        s_waitcnt lgkmcnt(0)
        v_mov_b32 v20, s8
        s_lshl_b32 s36, s2, 8
        s_add_u32 s36, s36, {WS_DIAG + 32}
        s_mov_b64 exec, 1
        buffer_store_dword v20, off, s[20:23], s36
        s_mov_b64 exec, -1
        """)
    e("s_branch K_end")
    e.label("K_fin")
    if DIAG:
        e(f"""
        s_cmp_lg_u32 s26, 0
        s_cbranch_scc1 K_end
        s_lshl_b32 s33, s2, 8
        s_add_u32 s33, s33, {WS_DIAG}
        v_lshlrev_b32 v41, 2, v1
        s_mov_b64 exec, 0xff
        buffer_store_dword v39, v41, s[20:23], s33 offen
        """)
    e.label("K_end")
    e("s_endpgm")
    return name


def main():
    ref = open(f"cdna_kernels/{NAME}.s.ref").read().split("\n")
    head = [l for l in ref if l.startswith(";") and "@launch" not in l and "Override launch" not in l and "grid=ceil" not in l]
    out = list(head)
    out.append(f"; @launch kernel=fused_kernel grid=({NWG},1,1) block=({NW*64},1,1) lds={LDS_BYTES}")
    out.append('.amdgcn_target "amdgcn-amd-amdhsa--gfx950"')
    out.append(".text")
    e = E()
    gen(e)
    s = "\n".join(out) + "\n" + e.text()
    s += '.section .rodata,"a"\n.p2align 6\n'
    s += kernel_desc("fused_kernel", NVGA, 102)
    open(OUT, "w").write(s)
    print("wrote", OUT, len(s))


if __name__ == "__main__":
    main()
```
